```python
import torch

def _softmax(x, axis=-1):
    return torch.softmax(x, dim=axis)
def _gelu(x):
    return torch.nn.functional.gelu(x, approximate="tanh")
def _silu(x):
    return torch.nn.functional.silu(x)
def _sigmoid(x):
    return torch.sigmoid(x)
def _layernorm(x, axis=-1, eps=1e-5):
    m = x.mean(dim=axis, keepdim=True)
    v = x.var(dim=axis, keepdim=True, unbiased=False)
    return (x - m) / torch.sqrt(v + eps)
def _scatter_add(tgt, idx, src, axis=0):
    return tgt.clone().index_add_(axis, idx, src)
def _segment_sum(src, seg, n):
    out = torch.zeros((n,) + src.shape[1:], dtype=src.dtype)
    return out.index_add_(0, seg, src)
def _pad(x, pw):
    flat = tuple(v for pair in reversed(pw) for v in pair)
    return torch.nn.functional.pad(x, flat)

kernel_name = 'gated_mix__compressed_kv_cla__dense_activation_silu__prompt'

def setup_inputs():

    _w = (lambda a: (lambda t: t.to(torch.bfloat16) if t.is_floating_point() else t)(torch.as_tensor(a)))
    def _A_setup():
        B, H, Sq, Sk, D, M = 1, 32, 2048, 2048, 128, 576
        Dc = 4 * D
        return {
            "x": _w((lambda *s: torch.randn(*s, dtype=torch.bfloat16) * 0.1)(B, Sq, M)),
            "c_kv": _w((lambda *s: torch.randn(*s, dtype=torch.bfloat16) * 0.8)(B, Sk, Dc)),
            "w_q": _w((lambda *s: torch.randn(*s, dtype=torch.bfloat16) * 6.4)(M, H, D) * (M ** -0.5)),
            "w_uk": _w((lambda *s: torch.randn(*s, dtype=torch.bfloat16) * 6.4)(Dc, H, D) * (Dc ** -0.5)),
            "w_uv": _w((lambda *s: torch.randn(*s, dtype=torch.bfloat16) * 0.8)(Dc, H, D) * (Dc ** -0.5)),
            "w_o": _w((lambda *s: torch.randn(*s, dtype=torch.bfloat16) * 0.8)(H, D, M) * ((H * D) ** -0.5)),
        }
    _A_in = _A_setup()

    def _B_setup():
        B, S, D, F = 1, 2048, 576, 4608
        return {
            "x": _w((lambda *s: torch.randn(*s, dtype=torch.bfloat16) * 0.1)(B, S, D)),
            "w1": _w((lambda *s: torch.randn(*s, dtype=torch.bfloat16) * 3.2)(D, F) * (D ** -0.5)),
            "w2": _w((lambda *s: torch.randn(*s, dtype=torch.bfloat16) * 3.2)(F, D) * (F ** -0.5)),
        }
    _B_in = _B_setup()

    return {
        "A_x": _A_in["x"],
        "A_c_kv": _A_in["c_kv"],
        "A_w_q": _A_in["w_q"],
        "A_w_uk": _A_in["w_uk"],
        "A_w_uv": _A_in["w_uv"],
        "A_w_o": _A_in["w_o"],
        "B_x": _B_in["x"],
        "B_w1": _B_in["w1"],
        "B_w2": _B_in["w2"],
        "gate_w": _w((lambda *s: torch.randn(*s, dtype=torch.bfloat16) * 0.1)(576) * 16.0),
    }

def reference(A_x, A_c_kv, A_w_q, A_w_uk, A_w_uv, A_w_o, B_x, B_w1, B_w2, gate_w):
    def _A_ref(x, c_kv, w_q, w_uk, w_uv, w_o):
        B, Sq, M = x.shape[0], x.shape[1], x.shape[2]
        Sk = c_kv.shape[1]
        H, D = w_q.shape[1], w_q.shape[2]
        q = torch.einsum("bqm,mhd->bhqd", x, w_q)
        k = torch.einsum("bkc,chd->bhkd", c_kv, w_uk)
        v = torch.einsum("bkc,chd->bhkd", c_kv, w_uv)
        scores = torch.einsum("bhqd,bhkd->bhqk", q, k) * (D ** -0.5)
        off = Sk - Sq
        qi = torch.arange(Sq)[:, None]
        kj = torch.arange(Sk)[None, :]
        cmask = kj <= (qi + off)
        scores = torch.where(cmask[None, None], scores, -1e9)
        p = _softmax(scores, axis=-1)
        ctx = torch.einsum("bhqk,bhkd->bhqd", p, v)
        return torch.einsum("bhqd,hdm->bqm", ctx, w_o)

    def _B_ref(x, w1, w2):
        h = torch.einsum("bsd,df->bsf", x, w1)
        h = _silu(h)
        out = torch.einsum("bsf,fd->bsd", h, w2)
        return out

    x = A_x
    g = _sigmoid((x * gate_w).sum(-1, keepdims=True))
    a = _A_ref(x, A_c_kv, A_w_q, A_w_uk, A_w_uv, A_w_o)
    b = _B_ref(x, B_w1, B_w2)
    return g * a + (1 - g) * b
```

```python
import re

class Ins:
    __slots__ = ('t', 'k', 'rd', 'wr', 'cost', 'tag', 'need', 'C', 'AB', 'n_lgkm', 'n_vm', 'lds')
    def __init__(s, t, k, rd=(), wr=(), cost=1, tag=None):
        s.t = t; s.k = k; s.rd = set(rd); s.wr = set(wr); s.cost = cost; s.tag = tag
        s.need = None; s.C = None; s.AB = None; s.n_lgkm = None; s.n_vm = None; s.lds = None
    def __repr__(s): return s.t

def R(kind, first, n=1):
    return [f"{kind}{first+i}" for i in range(n)]

class Reg:
    def __init__(s, kind, first, n=1): s.kind = kind; s.first = first; s.n = n
    def __str__(s):
        return f"{s.kind}{s.first}" if s.n == 1 else f"{s.kind}[{s.first}:{s.first+s.n-1}]"
    def regs(s): return R(s.kind, s.first, s.n)
    def __getitem__(s, i):
        if isinstance(i, slice):
            a = i.start or 0; b = i.stop if i.stop is not None else s.n
            assert 0 <= a < b <= s.n
            return Reg(s.kind, s.first + a, b - a)
        assert 0 <= i < s.n
        return Reg(s.kind, s.first + i, 1)
def V(f, n=1): return Reg('v', f, n)
def A(f, n=1): return Reg('a', f, n)
def S(f, n=1): return Reg('s', f, n)

def _regs(x):
    if isinstance(x, Reg): return x.regs()
    if isinstance(x, str):
        y = x.strip('-|')
        if y in ('vcc', 'exec', 'm0', 'scc'): return [y]
        m = re.fullmatch(r'([vas])(\d+)', y)
        if m: return [y]
    return []

def fmt(x):
    if isinstance(x, float): return repr(x)
    if isinstance(x, int):
        return str(x) if -16 <= x <= 64 else hex(x & 0xffffffff)
    return str(x)

def mfma(D, Aop, Bop, C=None):
    if C is None: C = D
    if C is D or (isinstance(C, Reg) and C.kind == D.kind and C.first == D.first):
        t = f"M{D.kind}{Aop.kind}{Bop.kind} {D.first},{Aop.first},{Bop.first}"
    elif isinstance(C, int):
        t = f"Z{D.kind}{Aop.kind}{Bop.kind} {D.first},{Aop.first},{Bop.first}"
    else:
        assert C.kind == D.kind
        t = f"C{D.kind}{Aop.kind}{Bop.kind} {D.first},{Aop.first},{Bop.first},{C.first}"
    rd = Aop.regs() + Bop.regs() + _regs(C)
    i = Ins(t, 'mfma', rd, D.regs(), cost=2)
    i.C = tuple(_regs(C)); i.AB = set(Aop.regs() + Bop.regs())
    return i

MACROS = ""
for d in 'va':
    for a in 'va':
        for b in 'va':
            MACROS += f".macro M{d}{a}{b} d,a,b\n v_mfma_f32_16x16x32_bf16 {d}[\\d:\\d+3], {a}[\\a:\\a+3], {b}[\\b:\\b+3], {d}[\\d:\\d+3]\n.endm\n"
            MACROS += f".macro Z{d}{a}{b} d,a,b\n v_mfma_f32_16x16x32_bf16 {d}[\\d:\\d+3], {a}[\\a:\\a+3], {b}[\\b:\\b+3], 0\n.endm\n"
            MACROS += f".macro C{d}{a}{b} d,a,b,c\n v_mfma_f32_16x16x32_bf16 {d}[\\d:\\d+3], {a}[\\a:\\a+3], {b}[\\b:\\b+3], {d}[\\c:\\c+3]\n.endm\n"
for d in 'va':
    MACROS += f".macro T{d} d,p,o\n ds_read_b64_tr_b16 {d}[\\d:\\d+1], v\\p offset:\\o\n.endm\n"
    MACROS += f".macro L{d} d,p,o\n ds_read_b128 {d}[\\d:\\d+3], v\\p offset:\\o\n.endm\n"
MACROS += ".macro PK d,a,b\n v_cvt_pk_bf16_f32 v\\d, v\\a, v\\b\n.endm\n"

TRANS = ('v_exp_f32', 'v_rcp_f32', 'v_log_f32', 'v_rsq_f32', 'v_sqrt_f32')
def valu(op, dst, *src, extra_rd=(), extra_wr=(), mods=""):
    k = 'trans' if op in TRANS else 'valu'
    if op.startswith('v_permlane'): k = 'perm'
    if op.startswith('v_readfirstlane') or op.startswith('v_readlane'): k = 'rfl'
    rd = list(extra_rd)
    for x in src: rd += _regs(x)
    wr = _regs(dst) + list(extra_wr)
    if k == 'perm':
        rd += _regs(dst); wr += _regs(src[0])
    if op.startswith('v_fmac') or op.startswith('v_dot2c'): rd += _regs(dst)
    if op == 'v_cvt_pk_bf16_f32' and all(isinstance(x, Reg) and x.kind == 'v' for x in (dst,) + src):
        t = f"PK {dst.first},{src[0].first},{src[1].first}"
    else:
        t = f"{op} {fmt(dst)}, " + ", ".join(fmt(x) for x in src) + mods
    return Ins(t, k, rd, wr, cost=2 if k == 'trans' else 1)

def salu(op, dst, *src):
    rd = []
    for x in src: rd += _regs(x)
    wr = _regs(dst)
    if op.startswith('s_cmp'):
        rd += _regs(dst); wr = ['scc']
    elif op.startswith('s_cselect') or op.startswith('s_addc') or op.startswith('s_subb'):
        rd.append('scc')
    if op.split('_')[1] in ('add', 'sub', 'addc', 'subb', 'and', 'or', 'xor', 'lshl', 'lshr', 'min', 'max', 'bfe', 'ashr', 'andn2'): wr = wr + ['scc']
    t = f"{op} {fmt(dst)}" + "".join(", " + fmt(x) for x in src)
    return Ins(t, 'salu', rd, wr)

def tr(dst, addr, off):
    assert dst.n == 2 and 0 <= off < 65536
    i = Ins(f"T{dst.kind} {dst.first},{addr.first},{off}", 'dsr', addr.regs(), dst.regs())
    return i
def dsr128(dst, addr, off):
    assert dst.n == 4 and 0 <= off < 65536
    return Ins(f"L{dst.kind} {dst.first},{addr.first},{off}", 'dsr', addr.regs(), dst.regs())
def dsr(op, dst, addr, off=0):
    return Ins(f"{op} {dst}, {addr} offset:{off}", 'dsr', addr.regs(), dst.regs())
def dsw(op, addr, src, off=0):
    assert 0 <= off < 65536
    return Ins(f"{op} {addr}, {src} offset:{off}", 'dsw', addr.regs() + src.regs(), ())
def bload(dst, voff, srd, soff, off=0, tag=None, fl=""):
    op = {1: 'buffer_load_dword', 2: 'buffer_load_dwordx2', 4: 'buffer_load_dwordx4'}[dst.n]
    assert 0 <= off < 4096
    o = f" offset:{off}" if off else ""
    return Ins(f"{op} {dst}, {voff}, {srd}, {fmt(soff)} offen{o}{fl}", 'vld', voff.regs() + srd.regs() + _regs(soff), dst.regs(), tag=tag)
def bstore(src, voff, srd, soff, off=0, tag=None, fl=""):
    op = {1: 'buffer_store_dword', 2: 'buffer_store_dwordx2', 4: 'buffer_store_dwordx4'}[src.n]
    assert 0 <= off < 4096
    o = f" offset:{off}" if off else ""
    i = Ins(f"{op} {src}, {voff}, {srd}, {fmt(soff)} offen{o}{fl}", 'vst', src.regs() + voff.regs() + srd.regs() + _regs(soff), (), tag=tag)
    i.AB = set(src.regs()) if src.n >= 3 else set()
    return i
def dma(voff, srd, soff, off=0, tag=None, fl=""):
    assert 0 <= off < 4096
    o = f" offset:{off}" if off else ""
    return Ins(f"buffer_load_dwordx4 {voff}, {srd}, {fmt(soff)} offen{o}{fl} lds", 'dma', voff.regs() + srd.regs() + _regs(soff) + ['m0'], (), tag=tag)
def sload(dst, base, off):
    op = {1: 's_load_dword', 2: 's_load_dwordx2', 4: 's_load_dwordx4', 8: 's_load_dwordx8'}[dst.n]
    return Ins(f"{op} {dst}, {base}, {off}", 'smem', base.regs(), dst.regs())
def wait(regs=(), tags=(), lgkm=None, vm=None):
    i = Ins("s_waitcnt ?", 'wait')
    rs = set()
    for x in regs: rs.update(_regs(x))
    i.need = (rs, set(tags)); i.n_lgkm = lgkm; i.n_vm = vm
    return i
def bar(): return Ins("s_barrier", 'bar')
def lab(n): return Ins(f"{n}:", 'lab', cost=0)
def br(op, target): return Ins(f"{op} {target}", 'br', ['scc'] if 'scc' in op else (['vcc'] if 'vcc' in op else []))
def nop(n): return Ins(f"s_nop {n}", 'nop')
def raw(t, k='salu', rd=(), wr=()): return Ins(t, k, rd, wr)

def schedule(backbone, forced, streams, cap=2, verbose=False):
    n = len(backbone)
    pos = [0] * len(streams)
    st = []
    for s in streams:
        s = [list(x) for x in s]
        for i in range(len(s) - 2, -1, -1):
            s[i][2] = min(s[i][2], s[i + 1][2])
        for i in range(1, len(s)):
            s[i][1] = max(s[i][1], s[i - 1][1])
        for x in s:
            assert x[1] <= x[2], (x[0].t, x[1], x[2])
        st.append(s)
    out = []
    over = 0
    for g in range(n + 1):
        used = 0
        for i in forced.get(g, []):
            out.append(i); used += i.cost
        while True:
            best = None
            for k, s in enumerate(st):
                if pos[k] < len(s):
                    ins, e, d = s[pos[k]]
                    if e <= g:
                        must = d <= g or g == n
                        fits = used + ins.cost <= cap
                        if must or fits:
                            key = (d, k)
                            if best is None or key < best[0]: best = (key, k)
            if best is None: break
            k = best[1]
            ins = st[k][pos[k]][0]
            out.append(ins); used += ins.cost; pos[k] += 1
        if 0 < g < n and used > cap:
            over += used - cap
            if verbose > 1: print('   over at', g, used)
        if g == n and verbose: print(f"  sched: {n} mfma, overflow slots {over}, tail slots {used}")
        if g < n: out.append(backbone[g])
    for k, s in enumerate(st): assert pos[k] == len(s)
    return out

LG = ('dsr', 'dsw')
VM = ('vld', 'vst', 'dma')
def flat(path):
    o = []
    for seg in path: o += seg
    return o

def resolve_waits(paths):
    for path in paths:
        seq = flat(path)
        for idx, ins in enumerate(seq):
            if ins.k != 'wait': continue
            regs, tags = ins.need
            if regs or tags:
                cl = cv = 0
                fl = fv = False
                for j in range(idx - 1, -1, -1):
                    p = seq[j]
                    if p.k in LG:
                        if not fl and (p.wr & regs or (p.tag is not None and p.tag in tags)):
                            fl = True
                            n = min(cl, 15)
                            ins.n_lgkm = n if ins.n_lgkm is None else min(ins.n_lgkm, n)
                        cl += 1
                    elif p.k in VM:
                        if not fv and (p.wr & regs or (p.tag is not None and p.tag in tags)):
                            fv = True
                            n = min(cv, 63)
                            ins.n_vm = n if ins.n_vm is None else min(ins.n_vm, n)
                        cv += 1
                    if (fl or cl > 64) and (fv or cv > 200): break
    for path in paths:
        for ins in flat(path):
            if ins.k == 'wait':
                t = "s_waitcnt"
                if ins.n_vm is not None: t += f" vmcnt({ins.n_vm})"
                if ins.n_lgkm is not None: t += f" lgkmcnt({ins.n_lgkm})"
                if t == "s_waitcnt": t = "s_nop 0"
                ins.t = t

def verify_waits(paths, name=""):
    for path in paths:
        lq = []; vq = []; sm = set()
        for ins in flat(path):
            if ins.k == 'wait':
                if ins.n_lgkm is not None:
                    while len(lq) > ins.n_lgkm: lq.pop(0)
                    if ins.n_lgkm == 0: sm = set()
                if ins.n_vm is not None:
                    while len(vq) > ins.n_vm: vq.pop(0)
                continue
            touched = ins.rd | ins.wr
            for q in lq + vq:
                if q.wr & touched:
                    raise Exception(f"{name}: missing wait: {ins.t} touches result of pending {q.t}")
            if sm & touched: raise Exception(f"{name}: missing smem wait at {ins.t}")
            if ins.k in LG: lq.append(ins)
            elif ins.k in VM:
                vq.append(ins)
                assert len(vq) <= 63, f"{name}: >63 vm ops outstanding at {ins.t}"
            elif ins.k == 'smem': sm |= ins.wr

VALUK = ('valu', 'trans', 'perm', 'rfl')
def need_states(p, c):
    n = 0
    if p.k in VALUK:
        vw = {r for r in p.wr if r[0] in 'va' and r != 'vcc'}
        sw = {r for r in p.wr if r[0] == 's' and r != 'scc' or r == 'vcc'}
        if c.k == 'mfma' and vw & c.rd: n = max(n, 2)
        if c.k == 'perm' and vw & c.rd: n = max(n, 2)
        if c.k == 'rfl' and vw & c.rd: n = max(n, 1)
        if 'dpp' in c.t or 'row_' in c.t:
            if vw & c.rd: n = max(n, 2)
        if p.k == 'trans' and c.k in ('valu', 'perm', 'rfl') and vw & c.rd: n = max(n, 1)
        if sw & c.rd:
            if c.k in VALUK: n = max(n, 2)
            if c.k in VM: n = max(n, 5)
            if c.k == 'rfl': n = max(n, 4)
            if c.k in ('salu', 'br'): n = max(n, 1)
        if 'exec' in p.wr: n = max(n, 5)
    if p.k == 'mfma':
        if c.k == 'mfma':
            if p.wr & c.AB: n = max(n, 8)
            cc = set(c.C)
            if p.wr & cc and p.wr != cc: n = max(n, 6)
        else:
            if p.wr & (c.rd | c.wr): n = max(n, 8)
            if c.k in VALUK and set(p.C) & c.wr: n = max(n, 3)
    if p.k == 'salu' and 'm0' in p.wr and c.k == 'dma': n = max(n, 1)
    if p.k == 'vst' and p.AB & c.wr: n = max(n, 2)
    return n

def states_of(i):
    if i.k == 'lab': return 0
    if i.k == 'nop': return int(i.t.split()[1]) + 1
    return 1

def fix_hazards(paths, name="", verbose=True):
    total = 0
    changed = True
    while changed:
        changed = False
        for path in paths:
            hist = []
            for seg in path:
                j = 0
                while j < len(seg):
                    c = seg[j]
                    need = 0; d = 0
                    for p in reversed(hist[-14:]):
                        if d >= 9: break
                        r = need_states(p, c)
                        if r > d: need = max(need, r - d)
                        d += states_of(p)
                    if need > 0:
                        np_ = nop(need - 1)
                        seg.insert(j, np_); hist.append(np_); j += 1
                        total += need; changed = True
                        if verbose: print(f"  hazard nop {need} before {c.t}")
                    hist.append(c); j += 1
    return total

def verify_scc(paths, name=""):
    for path in paths:
        last = None
        for ins in flat(path):
            if 'scc' in ins.rd:
                ok = last is not None and (last.t.startswith('s_cmp') or ins.t.startswith('s_addc') or ins.t.startswith('s_subb'))
                assert ok, f"{name}: scc consumer {ins.t} sees {last}"
            if 'scc' in ins.wr: last = ins

def finish(paths, name="", verbose=False):
    verify_scc(paths, name)
    t = fix_hazards(paths, name, verbose)
    resolve_waits(paths)
    verify_waits(paths, name)
    if t: print(f"  {name}: inserted {t} hazard wait states")

def text(seq):
    return "".join(i.t + "\n" for i in seq)

def verify_lds(path, name=""):
    content = {}
    reads = {}
    lq = []; vq = []
    def items(i):
        if not i.lds: return []
        if isinstance(i.lds[1], list): return list(zip(i.lds[1], i.lds[2]))
        return [(i.lds[1], i.lds[2])]
    def retire(q, rest):
        for slot, cid in items(q):
            if any(z.lds and z.lds[0] == q.lds[0] and slot in [x[0] for x in items(z)] for z in rest): continue
            if q.lds[0] == 'r': reads[slot] = 'released' if len(q.lds) > 3 else 'done'
            else: content[slot][1] = 'landed'
    for ins in flat(path):
        if ins.k == 'wait':
            if ins.n_lgkm is not None:
                while len(lq) > ins.n_lgkm: q = lq.pop(0); retire(q, lq)
            if ins.n_vm is not None:
                while len(vq) > ins.n_vm: q = vq.pop(0); retire(q, vq)
            continue
        if ins.k == 'bar':
            for s in content:
                if content[s][1] == 'landed': content[s][1] = 'ready'
            for s in reads:
                if reads[s] == 'done': reads[s] = 'released'
            continue
        for slot, cid in items(ins):
            if ins.lds[0] == 'r':
                ok = slot in content and content[slot][0] == cid and (content[slot][1] == 'ready' or (len(ins.lds) > 3 and content[slot][1] == 'landed'))
                assert ok, f"{name}: read of slot {slot} wants {cid}, has {content.get(slot)} at {ins.t}"
                reads[slot] = 'issued'
            else:
                assert reads.get(slot, 'released') == 'released', f"{name}: write to slot {slot} ({cid}) while reads {reads[slot]}"
                content[slot] = [cid, 'inflight']
        if ins.k in LG: lq.append(ins)
        elif ins.k in VM: vq.append(ins)

def srd(dst, ptr, nbytes):
    return [salu('s_mov_b32', dst[0], ptr[0]), salu('s_mov_b32', dst[1], ptr[1]),
            salu('s_mov_b32', dst[2], nbytes), salu('s_mov_b32', dst[3], 0x20000)]

KD = """.p2align 6
.amdhsa_kernel {name}
  .amdhsa_next_free_vgpr {nvgpr}
  .amdhsa_next_free_sgpr 96
  .amdhsa_accum_offset {accum}
  .amdhsa_group_segment_fixed_size 0
  .amdhsa_kernarg_size 104
  .amdhsa_user_sgpr_count 2
  .amdhsa_user_sgpr_kernarg_segment_ptr 1
  .amdhsa_system_sgpr_workgroup_id_x 1
.end_amdhsa_kernel
"""
def khead(name):
    return f".globl {name}\n.p2align 8\n.type {name},@function\n{name}:\n"
```

```python
from fw import *
import struct, math
def f2u(x): return struct.unpack('<I', struct.pack('<f', x))[0]

WS_Q, WS_K, WS_V, WS_CTX, WS_H, WS_G, WS_P = 0, 16 << 20, 32 << 20, 48 << 20, 64 << 20, 96 << 20, 100 << 20
GSTR = 128 * 1024
import os
STFL = os.environ.get("STFL", " sc0 sc1")
NOSTORE = os.environ.get("NOSTORE", "0") == "1"

class SubRound:
    def __init__(s, ks, slots, cids, parts, first, swap=False, bar=None, extra=()):
        s.ks = ks; s.slots = slots; s.cids = cids; s.parts = parts; s.first = first; s.swap = swap
        s.bar = bar
        s.extra = list(extra)
        s.start = s.end = None; s.bargap = None
        s.lastm = {}
        s.firstm = {}

def build_backbone(subs, act, TB, wbuf, trfn, rdlag=2):
    bb = []; forced = {}; rs = []
    for r, s in enumerate(subs):
        s.start = len(bb)
        fr = wbuf[r % 2]
        nk = len(s.ks)
        for p, (cb, acc) in enumerate(s.parts):
            for tb in range(TB):
                s.firstm[(p, tb)] = len(bb)
                for i, ks in enumerate(s.ks):
                    C = 0 if (s.first and i == 0) else None
                    if s.swap: bb.append(mfma(acc[tb], act(ks, tb), fr[p * nk + i], C))
                    else: bb.append(mfma(acc[tb], fr[p * nk + i], act(ks, tb), C))
                s.lastm[(p, tb)] = len(bb) - 1
        s.end = len(bb)
    for r, s in enumerate(subs):
        fr = wbuf[r % 2]
        nk = len(s.ks)
        reads = list(s.extra)
        for p, (cb, acc) in enumerate(s.parts):
            for i in range(nk):
                for h in range(2):
                    x = trfn(fr[p * nk + i][2 * h:2 * h + 2], cb, s.slots[i], h)
                    x.lds = ('r', s.slots[i], s.cids[i])
                    reads.append(x)
        need = [fr[i] for i in range(nk * len(s.parts))] + [act(ks, tb) for ks in s.ks for tb in range(TB)]
        if r == 0:
            forced.setdefault(0, []).extend([wait(tags=s.bar), bar()] + reads + [wait(regs=need)])
            s.bargap = 0
        else:
            p = subs[r - 1]
            e = p.start + 1
            if s.bar is not None:
                forced.setdefault(p.start + 1, []).extend([wait(tags=s.bar), bar()])
                s.bargap = p.start + 1
                e = p.start + 2
            for i, x in enumerate(reads):
                rs.append((x, e, min(e + rdlag + i // 2, p.end - 1)))
            forced.setdefault(s.start, []).insert(0, wait(regs=need))
    return bb, forced, rs

import os
STAMPS = os.environ.get("STAMPS", "0") == "1"
def stamp_begin():
    if not STAMPS: return []
    return [raw("s_memrealtime s[80:81]", 'smem', wr=['s80', 's81']), raw("s_memtime s[82:83]", 'smem', wr=['s82', 's83'])]
def stamp_end(li, sWS, sWave, wpb=4):
    if not STAMPS: return [raw('s_endpgm', 'br')]
    return [wait(vm=0), raw("s_memtime s[84:85]", 'smem', wr=['s84', 's85']), raw("s_memrealtime s[86:87]", 'smem', wr=['s86', 's87']), wait(lgkm=0),
            salu('s_sub_u32', S(84), S(84), S(82)),
            nop(7), valu('v_mov_b32', V(0), S(80)), valu('v_mov_b32', V(1), S(86)), valu('v_mov_b32', V(2), S(84)), valu('v_mov_b32', V(3), S(88)),
            salu('s_mul_i32', S(85), S(2), wpb), salu('s_add_u32', S(85), S(85), sWave), salu('s_lshl_b32', S(85), S(85), 4),
            salu('s_add_u32', S(85), S(85), (200 << 20) + li * 65536), valu('v_mov_b32', V(4), 0),
            bstore(V(0, 4), V(4), sWS, S(85)), raw('s_endpgm', 'br')]

PROF = os.environ.get("PROF", "0") == "1"
def prof_points(forced, subs, picks, vreg, first_idx=1):
    if not PROF: return
    idx = first_idx
    for r in picks:
        if r + 1 >= len(subs): continue
        forced.setdefault(subs[r].start, []).append(raw("s_memtime s[90:91]", 'smem', wr=['s90', 's91']))
        forced.setdefault(subs[r + 1].start, []).extend([wait(lgkm=0), raw(f"v_writelane_b32 {vreg}, s90, {idx}", 'valu', rd=['s90'], wr=[str(vreg)])])
        idx += 1
def prof_now(vreg, idx):
    if not PROF: return []
    return [raw("s_memtime s[90:91]", 'smem', wr=['s90', 's91']), wait(lgkm=0), raw(f"v_writelane_b32 {vreg}, s90, {idx}", 'valu', rd=['s90'], wr=[str(vreg)])]
def prof_end(li, vreg, vtmp, sWS, sWave, wpb=4):
    if not PROF: return []
    return prof_now(vreg, 62) + [wait(vm=0)] + prof_now(vreg, 63) + [raw(f"v_writelane_b32 {vreg}, s82, 0", 'valu', rd=['s82'], wr=[str(vreg)]),
            salu('s_mul_i32', S(85), S(2), wpb), salu('s_add_u32', S(85), S(85), sWave), salu('s_lshl_b32', S(85), S(85), 8),
            salu('s_add_u32', S(85), S(85), (208 << 20) + li * (1 << 20)),
            raw(f"v_mbcnt_lo_u32_b32 {vtmp}, -1, 0", 'valu', wr=[str(vtmp)]), raw(f"v_mbcnt_hi_u32_b32 {vtmp}, -1, {vtmp}", 'valu', rd=[str(vtmp)], wr=[str(vtmp)]),
            valu('v_lshlrev_b32', vtmp, 2, vtmp), bstore(vreg, vtmp, sWS, S(85)), wait(vm=0)]
```

```python
from gemm import *

sACT, sWA, sW1, sWS = S(4, 4), S(8, 4), S(12, 4), S(16, 4)
sWave, sCS, sTT = S(24), S(25), S(26)
sAO = [S(27 + i) for i in range(4)]
sM, sD, sT = S(31), S(32), S(33)
sColA, sColH, sStA, sStH = S(34), S(35), S(36), S(37)
sQC, sNL = S(38), S(39)
sSt = S(40)
sSz = [S(68), S(69)]
sP = S(44, 24)
vTR = [V(1 + i) for i in range(4)]
vDA = [V(5 + i) for i in range(4)]
vDH = [V(9 + i) for i in range(4)]
vST, vX = V(13), V(14)
vXD = [V(252), V(253)]
vXR = [V(254), V(255)]
vLane, vT0 = V(15), V(0)
ACTX = 16
ACC = 48
WB = 176
TMP = 208

def act(ks, tb):
    f = ks * 4 + tb
    return A(4 * f, 4) if f < 64 else V(ACTX + 4 * (f - 64), 4)

def setup_lanes(RING, strideA, strideH, actstride):
    o = []
    t0, t1, t2 = V(TMP), V(TMP + 1), V(TMP + 2)
    PS = 40 * 1024
    o += [valu('v_lshrrev_b32', t0, 4, vLane),
          salu('s_mov_b32', sT, PS),
          valu('v_mul_lo_u32', vTR[0], t0, sT),
          valu('v_and_b32', t1, 1, t0), valu('v_lshlrev_b32', t1, 6, t1),
          valu('v_add_u32', vTR[0], vTR[0], t1),
          valu('v_bfe_u32', t1, vLane, 2, 2),
          valu('v_lshlrev_b32', t2, 7, t1), valu('v_add_u32', vTR[0], vTR[0], t2),
          valu('v_lshrrev_b32', t1, 1, t1), valu('v_lshlrev_b32', t1, 5, t1), valu('v_add_u32', vTR[0], vTR[0], t1),
          valu('v_and_b32', t1, 3, vLane), valu('v_lshlrev_b32', t1, 3, t1), valu('v_add_u32', vTR[0], vTR[0], t1)]
    for cb in range(1, 4): o.append(valu('v_xor_b32', vTR[cb], cb * 32, vTR[0]))
    o += [valu('v_lshrrev_b32', t0, 3, vLane),
          valu('v_and_b32', t1, 2, t0),
          salu('s_and_b32', sT, sWave, 1), salu('s_lshl_b32', sT, sT, 2),
          valu('v_or_b32', t1, sT, t1),
          valu('v_and_b32', t2, 7, vLane), valu('v_xor_b32', t1, t1, t2), valu('v_lshlrev_b32', t1, 4, t1),
          salu('s_lshl_b32', sT, sWave, 3), valu('v_add_u32', t0, sT, t0)]
    for vD, st in ((vDA, strideA), (vDH, strideH)):
        if st is None: continue
        o += [salu('s_mov_b32', sT, st), valu('v_mul_lo_u32', vD[0], t0, sT), valu('v_add_u32', vD[0], vD[0], t1)]
        for i in range(1, 4): o.append(valu('v_add_u32', vD[i], i * (32 * st - 1024), vD[0]))
    o += [valu('v_lshlrev_b32', vST, 4, vLane),
          valu('v_and_b32', t0, 15, vLane), salu('s_mov_b32', sT, actstride), valu('v_mul_lo_u32', vX, t0, sT),
          valu('v_lshrrev_b32', t0, 4, vLane), valu('v_lshlrev_b32', t0, 4, t0), valu('v_add_u32', vX, vX, t0),
          salu('s_mul_i32', sM, sWave, PS)]
    o += [valu('v_lshrrev_b32', t0, 3, vLane), valu('v_mul_lo_u32', vXD[0], t0, sT),
          valu('v_lshrrev_b32', t1, 1, t0), valu('v_and_b32', t2, 7, vLane), valu('v_xor_b32', t1, t1, t2), valu('v_lshlrev_b32', t1, 4, t1),
          valu('v_xor_b32', t2, 64, t1), valu('v_add_u32', vXD[1], vXD[0], t2), valu('v_add_u32', vXD[1], 8 * actstride - 1024, vXD[1]),
          valu('v_add_u32', vXD[0], vXD[0], t1)]
    o += [valu('v_and_b32', t0, 15, vLane), valu('v_lshrrev_b32', t1, 1, t0), valu('v_lshrrev_b32', t2, 4, vLane), valu('v_xor_b32', t1, t1, t2),
          valu('v_lshlrev_b32', t1, 4, t1), valu('v_lshlrev_b32', t0, 7, t0), valu('v_add3_u32', vXR[0], t0, t1, sM), valu('v_xor_b32', vXR[1], 64, vXR[0])]
    o += [salu('s_lshl_b32', sT, sTT, 2), salu('s_add_u32', sT, sT, sWave), salu('s_mul_i32', sAO[0], sT, 64 * actstride)]
    for i in range(1, 4): o.append(salu('s_add_u32', sAO[i], sAO[0], i * 16 * actstride))
    return o

class Blk:
    def __init__(s, typ, idx, second=None):
        s.typ = typ; s.idx = idx
        if second is None: second = typ == 'H'
        s.st = 9216 if typ == 'H' else 8192
        s.srd, s.col, s.sto = (sW1, sColH, sStH) if second else (sWA, sColA, sStA)
DSTEP = int(os.environ.get("DSTEP", "4"))
FSTEP = int(os.environ.get("FSTEP", "4"))

def alloc_x(NU, PRE, npairs):
    import itertools
    W = lambda u: {u, NU + u} if 0 <= u < NU else set()
    sol = []
    def rec(u):
        if u == NU: return True
        forb = set()
        for v in range(max(0, u - PRE), u + PRE): forb |= W(v)
        for v in range(max(0, u - PRE + 1), u): forb |= set(sol[v])
        free = [p for p in range(npairs) if p not in forb]
        free.sort(key=lambda p: -p)
        for c in itertools.combinations(free, 4):
            sol.append(c)
            if rec(u + 1): return True
            sol.pop()
        return False
    assert rec(0)
    return sol

PRE = int(os.environ.get("PRE", "2"))
def l1_path(name, blocks, NK, CH, verbose=1):
    NG = NK // CH
    NU = NK // 2
    wbuf = [[V(WB + 4 * (4 * b + i), 4) for i in range(4)] for b in range(2)]
    def accset(s): return [[V(ACC + 32 * s + 16 * c + 4 * tb, 4) for tb in range(4)] for c in range(2)]
    def trfn(dst, cb, slot, h): return tr(dst, vTR[cb], slot * 1024 + h * 512)
    def dmagrp(b, k0, n):
        B = blocks[b]
        vD = vDH if B.st == 9216 else vDA
        o = [salu('s_add_u32', 'm0', sM, ((b & 1) * NK + k0) * 1024),
             salu('s_add_u32', sD, B.col, B.idx * 128 + k0 * 32 * B.st)]
        for i in range(n):
            x = dma(vD[i], B.srd, sD, i * 1024, tag=('w', b, k0 + i))
            x.lds = ('w', (b & 1) * NK + k0 + i, (b, k0 + i))
            o.append(x)
        return o
    xa = alloc_x(NU, PRE, 20)
    def xdma(u):
        o = []
        for tb in range(4):
            p = xa[u][tb]
            so, io = sAO[tb], u * 128
            if p == 0:
                o.append(salu('s_add_u32', sD, sAO[tb], u * 128)); so, io = sD, 0
            o.append(salu('s_add_u32', 'm0', sM, p * 2048 - io))
            for i in range(2):
                x = dma(vXD[i], sACT, so, io + i * 1024, tag=('x', u))
                x.lds = ('w', 2 * p + i, ('x', u, tb, i)); o.append(x)
        return o
    def xreads(u):
        o = []
        for kl in range(2):
            for tb in range(4):
                p = xa[u][tb]
                x = dsr128(act(2 * u + kl, tb), vXR[kl], p * 2048)
                x.lds = ('r', [2 * p, 2 * p + 1], [('x', u, tb, 0), ('x', u, tb, 1)], True); o.append(x)
        return o
    nb = len(blocks)
    subs = []
    lastsub = {}; firstsub = {}
    for u in range(NU):
        for b in range(2):
            for half in range(2):
                ks = [2 * u, 2 * u + 1]
                f = (b == 0 and half == 0)
                ac = accset(b * 2 + half)
                s = SubRound(ks, [b * NK + k for k in ks], [(b, k) for k in ks], [(half * 2, ac[0]), (half * 2 + 1, ac[1])], u == 0,
                             swap=blocks[b].typ == 'V', bar=[('w', bb_, k) for bb_ in range(2) for k in ks] + [('x', u)] if f else None,
                             extra=xreads(u) if f else ())
                subs.append(s); s.key = (b, half, 0, u)
                for c in range(2): lastsub[(b, half, c)] = (s, c)
    def free_at(slot):
        t = (slot % NK) // 2 + 1
        for u in range(NU):
            if slot // 2 in xa[u]: t = max(t, u)
        return t
    late = [k for k in range(NK) if free_at(k) >= NU - 1]
    firstlate = min(late) // CH
    if verbose > 1: print(xa, [free_at(k) for k in range(2 * NK)], firstlate)
    for b in range(2, nb):
        for half in range(2):
            for n in range(NG):
                for c in range(2):
                    ks = list(range(n * CH, n * CH + CH))
                    barr = None
                    if half == 0 and c == 0:
                        if b == 2:
                            if n == 0: barr = [('w', b, k) for k in range(firstlate * CH)]
                            if n == firstlate: barr = [('w', b, k) for k in range(NK)]
                        elif n == 0: barr = [('w', b, k) for k in range(NK)]
                    s = SubRound(ks, [(b & 1) * NK + k for k in ks], [(b, k) for k in ks], [(half * 2 + c, accset((b & 1) * 2 + half)[c])], n == 0,
                                 swap=blocks[b].typ == 'V', bar=barr)
                    subs.append(s); s.key = (b, half, c, n)
                    lastsub[(b, half, c)] = (s, 0)
                    if n == 0: firstsub[(b, half, c)] = (s, 0)
    bb, forced, rs = build_backbone(subs, act, 4, wbuf, trfn)
    sub = {s.key: s for s in subs}
    prof_points(forced, subs, [r for r, s in enumerate(subs) if (s.key[0] < 2 and s.key[:3] == (0, 0, 0)) or (s.key[0] >= 2 and s.key[2:] == (0, 0))], V(0), 2)
    N = len(bb)
    pro = []
    for u in range(PRE): pro += xdma(u) + dmagrp(0, 2 * u, 2) + dmagrp(1, 2 * u, 2)
    ms = []
    def spread(items, g0, step):
        g = g0
        for x in items:
            ms.append((x, g, g + 6))
            if x.k in VM: g += step
        return g
    pend = []
    if nb > 2: pend += [(2, u) for u in range(NU)]
    if nb > 3: pend += [(3, u) for u in range(NU)]
    for u in range(NU):
        g = sub[(0, 0, 0, u)].start + 1
        if u + PRE < NU:
            spread(xdma(u + PRE) + dmagrp(0, 2 * (u + PRE), 2) + dmagrp(1, 2 * (u + PRE), 2), g, FSTEP)
        else:
            cnt = 0
            for (b, m) in list(pend):
                if free_at((b & 1) * NK + 2 * m) <= u and cnt < 5:
                    g = spread(dmagrp(b, 2 * m, 2), g, FSTEP); pend.remove((b, m)); cnt += 1
    if nb > 2:
        g = sub[(2, 0, 0, 0)].bargap + 1
        for (b, m) in pend: g = spread(dmagrp(b, 2 * m, 2), g, 6)
    for b in range(3, nb - 1):
        g = sub[(b, 0, 0, 0)].bargap + 1
        k = 0
        while k < NK:
            n = min(4, NK - k)
            g = spread(dmagrp(b + 1, k, n), g, DSTEP); k += n
    ess = [[], []]
    LAG = 4
    tp = [0, 0]
    def tmp(q, n):
        if tp[q] + n > 20: tp[q] = 0
        r = V(TMP + 20 * q + tp[q], n); tp[q] += n; return r
    for b in range(nb):
        B = blocks[b]
        for half in range(2):
            ac = accset((b & 1) * 2 + half)
            last = [lastsub[(b, half, c)] for c in range(2)]
            nxt = [firstsub.get((b + 2, half, c)) for c in range(2)]
            H = B.typ == 'H'
            for j in range(4):
                z = j & 1
                if B.typ == 'V': tiles = [(j >> 1, (j & 1) * 2), (j >> 1, (j & 1) * 2 + 1)]
                else: tiles = [(0, j), (1, j)]
                e = max(last[c][0].lastm[(last[c][1], tb)] for c, tb in tiles) + 1 + LAG
                d = min(nxt[c][0].firstm[(0, tb)] for c, tb in tiles) if nxt[0] else N
                e = min(e, N)
                items = []
                if j < 2:
                    items.append(salu('s_add_u32', sSz[z], B.sto, (B.idx * 2 + half) * GSTR))
                out = tmp(z, 4)
                for q, (c, tb) in enumerate(tiles):
                    src = ac[c][tb]
                    if B.typ == 'K':
                        t = tmp(z, 4)
                        items += [valu('v_mul_f32', t[i], sQC, src[i]) for i in range(4)]
                        src = t
                    elif H:
                        t = tmp(z, 4)
                        items += [valu('v_mul_f32', t[i], sNL, src[i]) for i in range(4)]
                        items += [valu('v_exp_f32', t[i], t[i]) for i in range(4)]
                        items += [valu('v_add_f32', t[i], 1.0, t[i]) for i in range(4)]
                        items += [valu('v_rcp_f32', t[i], t[i]) for i in range(4)]
                        items += [valu('v_mul_f32', t[i], t[i], src[i]) for i in range(4)]
                        src = t
                    items += [valu('v_cvt_pk_bf16_f32', out[2 * q], src[0], src[1]), valu('v_cvt_pk_bf16_f32', out[2 * q + 1], src[2], src[3])]
                if not NOSTORE: items.append(bstore(out, vST, sWS, sSz[z], j * 1024, fl=STFL))
                for x in items: ess[z].append((x, e, d))
    if verbose: print(name)
    body = schedule(bb, forced, [rs, ms] + ess, verbose=verbose)
    return pro + prof_now(V(0), 1) + body

def gate_code():
    o = []
    W = 16
    XR = 160
    t = V(236, 8); acc = V(246); vG = V(247); a2 = V(248)
    o += [valu('v_lshrrev_b32', vG, 4, vLane), valu('v_lshlrev_b32', vG, 4, vG)]
    for ks in range(18): o.append(bload(V(XR + 4 * ks, 4), vG, sWA, 0, ks * 64))
    o.append(wait(vm=0))
    for i in range(72):
        o += [valu('v_lshlrev_b32', V(W + 2 * i), 16, V(XR + i)), valu('v_and_b32', V(W + 2 * i + 1), 0xffff0000, V(XR + i))]
    o += [valu('v_and_b32', vG, 15, vLane), valu('v_lshlrev_b32', vG, 2, vG),
          salu('s_lshl_b32', sT, sTT, 2), salu('s_add_u32', sT, sT, sWave), salu('s_lshl_b32', sSt, sT, 8),
          salu('s_add_u32', sSt, sSt, WS_G), salu('s_mov_b32', sD, 4)]
    lp = [lab('L1_gate_loop')]
    for ks in range(18): lp.append(bload(V(XR + 4 * ks, 4), vX, sACT, sAO[0], ks * 64))
    lp += [valu('v_mov_b32', acc, 0), valu('v_mov_b32', a2, 0), wait(vm=0)]
    for i in range(72):
        q = (i & 1) * 4
        lp += [valu('v_lshlrev_b32', t[q], 16, V(XR + i)), valu('v_and_b32', t[q + 1], 0xffff0000, V(XR + i)),
               valu('v_mul_f32', t[q], t[q], V(W + 2 * i)), valu('v_mul_f32', t[q + 1], t[q + 1], V(W + 2 * i + 1)),
               valu('v_cvt_pk_bf16_f32', t[q + 2], t[q], t[q + 1]),
               valu('v_lshlrev_b32', t[q], 16, t[q + 2]), valu('v_and_b32', t[q + 1], 0xffff0000, t[q + 2]),
               valu('v_add_f32', acc, acc, t[q]), valu('v_add_f32', a2, a2, t[q + 1])]
    lp += [valu('v_add_f32', acc, acc, a2), valu('v_mov_b32', a2, acc), valu('v_permlane32_swap_b32', acc, a2),
           valu('v_add_f32', acc, acc, a2), valu('v_mov_b32', a2, acc), valu('v_permlane16_swap_b32', acc, a2),
           valu('v_add_f32', acc, acc, a2),
           valu('v_cvt_pk_bf16_f32', acc, acc, acc), valu('v_and_b32', acc, 0xffff0000, acc),
           valu('v_mul_f32', acc, sNL, acc), valu('v_exp_f32', acc, acc), valu('v_add_f32', acc, 1.0, acc), valu('v_rcp_f32', acc, acc),
           valu('v_cvt_pk_bf16_f32', acc, acc, acc), valu('v_and_b32', acc, 0xffff0000, acc),
           valu('v_sub_f32', a2, 1.0, acc),
           valu('v_cvt_pk_bf16_f32', a2, a2, a2), valu('v_and_b32', a2, 0xffff0000, a2),
           bstore(acc, vG, sWS, sSt, 0, fl=STFL), salu('s_add_u32', sT, sSt, 8192), bstore(a2, vG, sWS, sT, 0, fl=STFL),
           salu('s_add_u32', sSt, sSt, 64), salu('s_add_u32', sAO[0], sAO[0], 16 * 1152),
           salu('s_sub_u32', sD, sD, 1), salu('s_cmp_lg_u32', sD, 0), br('s_cbranch_scc1', 'L1_gate_loop')]
    return o, lp

def gen_l1():
    P = lambda i: sP[2 * i:2 * i + 2]
    head = [salu('s_cmp_ge_u32', S(2), 256), br('s_cbranch_scc1', 'L1_exit')] + stamp_begin() + [
            sload(sP[0:8], S(0, 2), 0), sload(sP[8:16], S(0, 2), 32), sload(sP[16:20], S(0, 2), 64), sload(sP[20:22], S(0, 2), 96),
            valu('v_lshrrev_b32', V(TMP), 6, V(0)), valu('v_and_b32', vLane, 63, V(0)),
            valu('v_readfirstlane_b32', sWave, V(TMP)),
            salu('s_and_b32', sCS, S(2), 7), salu('s_lshl_b32', sCS, sCS, 2), salu('s_bfe_u32', sT, S(2), 3 | (2 << 16)),
            salu('s_add_u32', sCS, sCS, sT), salu('s_lshr_b32', sTT, S(2), 5),
            salu('s_mov_b32', sQC, f2u(math.log2(math.e) / math.sqrt(128))), salu('s_mov_b32', sNL, f2u(-math.log2(math.e))),
            wait(lgkm=0)]
    head += srd(sWS, P(10), 256 << 20) + srd(sW1, P(7), 576 * 4608 * 2)
    head += [salu('s_lshl_b32', sT, sTT, 2), salu('s_add_u32', sT, sT, sWave), salu('s_lshl_b32', sSt, sT, 12),
             salu('s_cmp_lt_u32', sCS, 17), br('s_cbranch_scc1', 'L1_x'),
             salu('s_cmp_lt_u32', sCS, 24), br('s_cbranch_scc1', 'L1_k'),
             salu('s_cmp_lt_u32', sCS, 31), br('s_cbranch_scc1', 'L1_v')]
    def cpre(lbl, wptr, ws, b0reg_code):
        o = [lab(lbl)] if lbl else []
        o += srd(sACT, P(1), 2048 * 512 * 2) + srd(sWA, wptr, 512 * 4096 * 2)
        o += b0reg_code
        o += [salu('s_lshl_b32', sColA, sT, 7), salu('s_mul_i32', sStA, sT, 2 * GSTR), salu('s_add_u32', sStA, sStA, ws),
              salu('s_lshl_b32', sT, sTT, 2), salu('s_add_u32', sT, sT, sWave), salu('s_lshl_b32', sT, sT, 12),
              salu('s_add_u32', sStA, sStA, sT)]
        o += setup_lanes(32, 8192, None, 1024)
        return o
    end = lambda: prof_end(0, V(0), V(1), sWS, sWave) + stamp_end(0, sWS, sWave)
    m1 = cpre(None, P(3), WS_K, [salu('s_mov_b32', sT, 62)]) + l1_path('miscK', [Blk('K', 0), Blk('K', 1)], 16, 4)
    m2 = [wait(lgkm=0, vm=0), bar()] + cpre(None, P(4), WS_V, [salu('s_mov_b32', sT, 62)]) + l1_path('miscV', [Blk('V', 0), Blk('V', 1)], 16, 4)
    g0, gl = gate_code()
    m3 = srd(sACT, P(0), 2048 * 576 * 2) + srd(sWA, P(9), 576 * 2) + setup_lanes(36, 8192, None, 1152) + g0
    m4 = end() + [lab('L1_exit'), raw('s_endpgm', 'br')]
    kp = cpre('L1_k', P(3), WS_K, [salu('s_sub_u32', sT, sCS, 17), salu('s_mul_i32', sT, sT, 9)]) + \
        l1_path('K', [Blk('K', i) for i in range(9)], 16, 4) + end()
    vp = cpre('L1_v', P(4), WS_V, [salu('s_sub_u32', sT, sCS, 24), salu('s_mul_i32', sT, sT, 9)]) + \
        l1_path('V', [Blk('V', i) for i in range(9)], 16, 4) + end()
    xp = [lab('L1_x')] + srd(sACT, P(0), 2048 * 576 * 2) + srd(sWA, P(2), 576 * 4096 * 2) + setup_lanes(36, 8192, 9216, 1152)
    sA, sB = S(41), S(42)
    xp += [salu('s_lshl_b32', sA, sCS, 2), salu('s_mul_i32', sT, sCS, 3), salu('s_add_u32', sT, sT, 13), salu('s_min_u32', sA, sA, sT),
           salu('s_lshl_b32', sB, sCS, 2), salu('s_mul_i32', sT, sCS, 5), salu('s_sub_u32', sT, sT, 13), salu('s_max_i32', sB, sB, sT),
           salu('s_lshl_b32', sColA, sA, 7), salu('s_lshl_b32', sColH, sB, 7),
           salu('s_mul_i32', sStA, sA, 2 * GSTR), salu('s_add_u32', sStA, sStA, sSt), salu('s_add_u32', sStA, sStA, WS_Q),
           salu('s_mul_i32', sStH, sB, 2 * GSTR), salu('s_add_u32', sStH, sStH, sSt), salu('s_add_u32', sStH, sStH, WS_H),
           salu('s_cmp_lt_u32', sCS, 13), br('s_cbranch_scc0', 'L1_xb')]
    Q = lambda i: Blk('Q', i); Hh = lambda i: Blk('H', i)
    xa = l1_path('xA', [Q(0), Hh(0), Hh(1), Q(1), Hh(2), Hh(3), Q(2), Q(3)], 18, 3) + end()
    xb = [lab('L1_xb')] + l1_path('xB', [Q(0), Hh(0), Hh(1), Hh(2), Q(1), Hh(3), Hh(4), Q(2)], 18, 3) + end()
    paths = [[head, m1, m2, m3, gl, gl, m4], [head, kp], [head, vp], [head, xp, xa], [head, xp, xb]]
    finish(paths, 'L1')
    for p in paths: verify_lds(p, 'L1')
    return text(head + m1 + m2 + m3 + gl + m4 + kp + vp + xp + xa + xb)

if __name__ == '__main__':
    t = gen_l1()
    print(len(t), t.count('\n'))
```

```python
from gemm import *

sWS = S(16, 4)
sWave, sH, sPp, sT, sTn, sR = S(24), S(25), S(26), S(27), S(28), S(29)
sKb, sVb, sKn, sKrun, sVrun = S(30), S(31), [S(32), S(33)], S(34), S(35)
sD, sTmp, sM, sRH, sKH = S(36), S(37), S(38), S(39), S(40)
sQo = [S(41 + i) for i in range(4)]
sCo = [S(45), S(46)]
sBad, sSafe, sPass = S(47), S(48), S(49)
sGq = [S(50 + i) for i in range(4)]
sVn = S(54)
sD2 = S(55)
sMsk = S(56, 2)
sP = S(60, 2)
OOB = 0x10000000
vL16, vL16b = V(1), V(2)
vK = [V(3), V(4)]; vV = [V(5), V(6)]
vG = [V(7), V(8)]
vMW, vMR, vLW, vLR = V(9), V(10), V(11), V(12)
vChk = V(13); vLane = V(14); vT0 = V(15); vT1 = V(0)
SB, PB, OK_, LK, CI, CD = 16, 80, 144, 208, 216, 232
vPROF = V(250)
def St(kb, q): return V(SB + 4 * (kb * 4 + q), 4)
def Pf(e, c, q): return V(PB + 32 * e + 4 * (c * 4 + q), 4)
def O(db, q): return V(OK_ + 4 * (db * 2 + q), 4) if q < 2 else A(64 + 4 * (db * 2 + q - 2), 4)
def Lq(q): return V(LK + 4 * q, 4) if q < 2 else A(128 + 4 * (q - 2), 4)
def Qf(ks, q): return A(4 * (q * 4 + ks), 4)
ONES = A(136, 4)
def FB(i, j): return A(140 + 16 * i + 4 * j, 4)
def Ci(q): return V(CI + 4 * q, 4)
def Cd(q, b): return V(CD + 8 * (q // 3) + 4 * b, 4)
KB0, VB0, MRG = 0, 65536, 98304

PAIRS = {0: [[0, 1, 2, 3], [3]], 1: [[0, 1, 3], [0, 1]]}
BND = {0: {(0, 0), (1, 3)}, 1: {(0, 3), (1, 0)}}
FULL = [[0, 1, 2, 3], [0, 1, 2, 3]]
TX, TA = 11, 15
LAG = 4
VMG = 4

class Seg:
    def __init__(s): s.bb = []; s.forced = {}; s.rs = []; s.ms = []; s.sm = [[], []]; s.xs = []; s.tile_end = {}; s.tile_start = {}; s.pfirst = {}; s.tail = []
    def n(s): return len(s.bb)
    def force(s, g, items): s.forced.setdefault(g, []).extend(items)
    def qk(s, kb, qs, kh=None):
        c, b = kb >> 1, kb & 1
        for q in qs:
            C = Cd(q, b) if (kh is not None and (c, q) in BND[kh]) else Ci(q)
            s.tile_start[(kb, q)] = s.n()
            for ks in range(4):
                s.bb.append(mfma(St(kb, q), FB(kb, ks), Qf(ks, q), C if ks == 0 else None))
            s.tile_end[(kb, q)] = s.n()
    def lsum(s, e, pairs, first=False):
        for q in range(4):
            cs = [c for c in range(2) if q in pairs[c]]
            for i, c in enumerate(cs):
                s.pfirst.setdefault((e, c, q), s.n())
                s.bb.append(mfma(Lq(q), ONES, Pf(e, c, q), 0 if (first and i == 0) else None))
    def pv(s, i, e, pairs, first=False):
        for d in range(2):
            for q in range(4):
                cs = [c for c in range(2) if q in pairs[c]]
                for k, c in enumerate(cs):
                    s.pfirst.setdefault((e, c, q), s.n())
                    s.bb.append(mfma(O(2 * i + d, q), FB(i, 2 * d + c), Pf(e, c, q), 0 if (first and k == 0) else None))
    def kreads(s, kb, buf, cid, e, d):
        for ks in range(4):
            x = dsr128(FB(kb, ks), vK[kb >> 1], buf * 32768 + ks * 8192 + (kb & 1) * 1024); x.lds = ('r', ('K', buf), cid)
            s.rs.append((x, e, d))
    def vreads(s, i, buf, cid, e, d):
        for dd in range(2):
            for c in range(2):
                x = dsr128(FB(i, 2 * dd + c), vV[c], buf * 32768 + i * 8192 + dd * 2048); x.lds = ('r', ('V', buf), cid)
                s.rs.append((x, e, d))
    def soft(s, tiles, e, efn, dfn):
        for j, (kb, q) in enumerate(tiles):
            T = St(kb, q); Pq = Pf(e, kb >> 1, q); b = kb & 1
            it = [valu('v_exp_f32', T[i], T[i]) for i in range(4)]
            it += [valu('v_cvt_pk_bf16_f32', Pq[2 * b], T[0], T[1]), valu('v_cvt_pk_bf16_f32', Pq[2 * b + 1], T[2], T[3])]
            z = (kb * 4 + q) & 1
            for x in it: s.sm[z].append((x, efn(kb, q), dfn(kb, q)))
    def mem(s, items, g0, step):
        g = g0
        for x in items:
            s.ms.append((x, g, g + 6))
            if x.k in VM: g += step
        return g
    def emit(s, name):
        n = s.n()
        clip = lambda st: [(x, min(e, n), min(d, n)) for x, e, d in st]
        print(name, end="")
        return schedule(s.bb, s.forced, [clip(s.rs), clip(s.ms), clip(s.sm[0]), clip(s.sm[1]), clip(s.xs)], verbose=1) + s.tail

def dmahalf(kind, buf, half, soff, cid):
    base = (KB0 if kind == 'K' else VB0) + buf * 32768 + half * 4096
    o = [salu('s_add_u32', 'm0', sM, base)]
    for i in range(4):
        x = dma(vL16b if half else vL16, sWS, soff, i * 1024, tag=(kind, buf)); x.lds = ('w', (kind, buf), cid); o.append(x)
    return o
def fbw(i, j, tags=()): return wait(regs=[FB(a, b) for a in (i, j) for b in range(4)], tags=tags)
ALLT = [(kb, q) for kb in range(4) for q in range(4)]

CID = 0

def ksel(par, thresh):
    return [salu('s_cmp_ge_u32', sR, thresh), salu('s_cselect_b32', sD, sKrun, sKn[par]), salu('s_add_u32', sKrun, sKrun, 8192)]

def seg_Ha(e):
    s = Seg()
    for kb in range(4): s.qk(kb, range(4))
    s.lsum(e, FULL); s.pv(0, e, FULL); s.pv(1, e, FULL)
    n = s.n()
    s.force(0, [fbw(0, 1)])
    s.kreads(2, e ^ 1, CID, 1, 14); s.kreads(3, e ^ 1, CID, 1, 20)
    s.force(32, [fbw(2, 3, [('V', e)]), bar()])
    s.vreads(0, e, CID, 33, 50); s.vreads(1, e, CID, 33, 58)
    s.force(72, [fbw(0, 1)])
    s.vreads(2, e, CID, 65, 86); s.vreads(3, e, CID, 65, 94)
    s.soft(ALLT[TA:], e, lambda kb, q: 0, lambda kb, q: s.tile_start[(kb, q)])
    s.soft(ALLT[:TX], e ^ 1, lambda kb, q: s.tile_end[(kb, q)] + LAG, lambda kb, q: n - 1)
    g = s.mem(dmahalf('V', e ^ 1, 1, sVrun, CID) + [salu('s_add_u32', sVrun, sVrun, 8192)], 2, 8)
    s.mem(ksel(e ^ 1, 2) + dmahalf('K', e ^ 1, 0, sD, CID) + dmahalf('K', e ^ 1, 1, sD, CID), 34, 8)
    s.tail = [salu('s_cmp_eq_u32', sR, 0), br('s_cbranch_scc1', f'L2_T{e}')]
    return s.emit(f"Ha{e}")

def seg_Hb(e, kh=None, jump=None):
    s = Seg()
    pr = FULL if kh is None else PAIRS[kh]
    s.pv(2, e, pr, kh is not None); s.pv(3, e, pr, kh is not None)
    n = s.n()
    s.force(0, [fbw(2, 3, [('K', e)]), bar()])
    s.kreads(0, e, CID, 1, n - 10); s.kreads(1, e, CID, 1, n - 4)
    s.soft(ALLT[TX:TA], e ^ 1, lambda kb, q: 0, lambda kb, q: n - 1)
    s.mem([salu('s_sub_u32', sR, sR, 1)] + dmahalf('V', e, 0, sVrun, CID), 2, 8 if kh is None else 5)
    if jump: s.tail = [br('s_branch', jump)]
    return s.emit(f"Hb{e}{kh}")

def seg_Tb(e, kh=None, jump=None):
    s = Seg()
    pr = FULL if kh is None else PAIRS[kh]
    s.pv(2, e, pr, kh is not None); s.pv(3, e, pr, kh is not None)
    n = s.n()
    s.force(0, [fbw(2, 3, [('V', e ^ 1)]), bar()])
    s.vreads(0, e ^ 1, CID, 1, n - 6); s.vreads(1, e ^ 1, CID, 1, n - 2)
    s.soft(ALLT[TX:], e ^ 1, lambda kb, q: 0, lambda kb, q: n)
    if jump: s.tail = [br('s_branch', jump)]
    return s.emit(f"Tb{e}{kh}")

def qloads():
    o = []
    for q in range(4):
        for ks in range(4):
            o += [salu('s_add_u32', sD2, sQo[q], ks * GSTR), bload(Qf(ks, q), vL16, sWS, sD2, 0)]
    return o

def seg_Tc(e, jump=None):
    s = Seg()
    s.lsum(e, FULL)
    for i in range(4): s.pv(i, e, FULL)
    n = s.n()
    s.force(8, [fbw(0, 1)])
    s.vreads(2, e, CID, 1, 20); s.vreads(3, e, CID, 1, 28)
    s.force(40, [fbw(2, 3), bar()])
    s.mem(qloads(), 2, 4)
    if jump: s.tail = [br('s_branch', jump)]
    return s.emit(f"Tc{e}")

def zero_init(kh):
    if kh == 0: return []
    o = []
    for r in [O(db, 2) for db in range(8)] + [Lq(2)]:
        o += [valu('v_accvgpr_write_b32', r[i], 0) for i in range(4)]
    return o

def seg_D1(kh):
    s = Seg()
    pr = PAIRS[kh]
    dt = [(kb, q) for kb in range(4) for q in pr[kb >> 1]]
    st = []
    for kb in range(4): st.append(s.n()); s.qk(kb, pr[kb >> 1], kh)
    dend = dict(s.tile_end)
    a0 = s.n()
    for kb in range(4): s.qk(kb, range(4))
    b0 = s.n()
    s.lsum(0, pr, True); p0 = s.n(); s.pv(0, 0, pr, True); s.pv(1, 0, pr, True)
    n = s.n()
    for kb in range(4): s.kreads(kb, 0, CID, 0, 0)
    s.rs.append((wait(regs=[FB(0, j) for j in range(4)] + [Qf(ks, q) for ks in range(4) for q in range(4)]), 0, 0))
    s.force(st[1], [wait(regs=[FB(1, j) for j in range(4)])])
    s.force(st[2], [fbw(2, 3, [('K', 1)]), bar()])
    s.kreads(0, 1, CID, st[2], st[2] + 2); s.kreads(1, 1, CID, st[2], st[2] + 5)
    s.force(a0, [wait(regs=[FB(0, j) for j in range(4)])])
    s.force(a0 + 16, [wait(regs=[FB(1, j) for j in range(4)])])
    s.kreads(2, 1, CID, a0 + 1, a0 + 14); s.kreads(3, 1, CID, a0 + 1, a0 + 20)
    s.force(a0 + 32, [fbw(2, 3, [('V', 0)]), bar()])
    s.vreads(0, 0, CID, a0 + 33, a0 + 50); s.vreads(1, 0, CID, a0 + 33, a0 + 58)
    s.force(p0, [fbw(0, 1)])
    s.vreads(2, 0, CID, b0 + 1, n - 8); s.vreads(3, 0, CID, b0 + 1, n - 3)
    s.soft(dt, 0, lambda kb, q: dend[(kb, q)] + LAG, lambda kb, q: s.tile_start[(kb, q)])
    s.soft(ALLT[:TX], 1, lambda kb, q: s.tile_end[(kb, q)] + LAG, lambda kb, q: n - 1)
    for x in zero_init(kh): s.xs.append((x, 0, n - 1))
    g = s.mem(dmahalf('V', 1, 0, sVrun, CID) + dmahalf('V', 1, 1, sVrun, CID) + [salu('s_add_u32', sVrun, sVrun, 8192)], 1, 4)
    g = s.mem(ksel(0, 1) + dmahalf('K', 0, 0, sD, CID) + dmahalf('K', 0, 1, sD, CID), max(g, st[2] + 1), 5)
    s.mem(ksel(1, 2) + dmahalf('K', 1, 0, sD, CID) + dmahalf('K', 1, 1, sD, CID), max(g, a0 + 33), 5)
    s.tail = [salu('s_cmp_eq_u32', sR, 0), br('s_cbranch_scc1', f'L2_Td{kh}')]
    return s.emit(f"D1{kh}")

def seg_Z(kh):
    s = Seg()
    pr = PAIRS[kh]
    dt = [(kb, q) for kb in range(4) for q in pr[kb >> 1]]
    st = []
    for kb in range(4): st.append(s.n()); s.qk(kb, pr[kb >> 1], kh)
    b0 = s.n()
    s.lsum(0, pr, True); p0 = s.n(); s.pv(0, 0, pr, True); s.pv(1, 0, pr, True)
    p2 = s.n(); s.pv(2, 0, pr, True); s.pv(3, 0, pr, True)
    n = s.n()
    for kb in range(4): s.kreads(kb, 0, CID, 0, 0)
    s.rs.append((wait(regs=[FB(0, j) for j in range(4)] + [Qf(ks, q) for ks in range(4) for q in range(4)]), 0, 0))
    s.force(st[1], [wait(regs=[FB(1, j) for j in range(4)])])
    s.force(st[2], [fbw(2, 3, [('V', 0)]), bar()])
    s.vreads(0, 0, CID, st[2], b0); s.vreads(1, 0, CID, st[2], b0)
    s.force(p0, [fbw(0, 1)])
    s.vreads(2, 0, CID, b0, p0 + 4); s.vreads(3, 0, CID, b0, p0 + 8)
    s.force(p2, [fbw(2, 3), bar()])
    s.soft(dt, 0, lambda kb, q: min(s.tile_end[(kb, q)] + LAG, b0), lambda kb, q: b0)
    for x in zero_init(kh): s.xs.append((x, 0, n - 1))
    s.tail = [br('s_branch', 'L2_E')]
    return s.emit(f"Z{kh}")

def tile_setup():
    o = [salu('s_sub_u32', sR, sT, 1), salu('s_add_u32', sKrun, sKb, 8192), salu('s_mov_b32', sVrun, sVb),
         salu('s_lshl_b32', sTmp, sTn, 13), salu('s_add_u32', sKn[0], sKb, sTmp), salu('s_add_u32', sVn, sVb, sTmp),
         salu('s_cmp_eq_u32', sPass, 0),
         salu('s_cselect_b32', sKn[0], sKn[0], OOB), salu('s_cselect_b32', sKn[1], sKb, OOB), salu('s_cselect_b32', sVn, sVn, OOB)]
    o += [salu('s_add_u32', sCo[q], sQo[q], WS_CTX) for q in range(2)]
    o += qoffs(sTn)
    o += [salu('s_cmp_eq_u32', sPass, 0)] + [salu('s_cselect_b32', sQo[q], sQo[q], OOB) for q in range(4)]
    o += [valu('v_and_b32', vT0, 15, vLane), valu('v_lshlrev_b32', vT0, 2, vT0)]
    for q in range(2):
        o += [salu('s_lshl_b32', sTmp, sT, 13), salu('s_add_u32', sTmp, sTmp, sGq[q]), salu('s_lshr_b32', sTmp, sTmp, 4),
              salu('s_add_u32', sTmp, sTmp, WS_G), bload(vG[q], vT0, sWS, sTmp)]
    return o
def qoffs(st):
    o = [salu('s_lshl_b32', sTmp, st, 13), salu('s_mul_i32', sD2, sH, 4 * GSTR), salu('s_add_u32', sTmp, sTmp, sD2)]
    o += [salu('s_add_u32', sQo[q], sTmp, sGq[q]) for q in range(4)]
    return o

def make_cd():
    o = []
    t0, t1 = V(SB), V(SB + 1)
    o += [valu('v_and_b32', t0, 15, vLane), valu('v_lshrrev_b32', t1, 4, vLane), valu('v_lshlrev_b32', t1, 2, t1), valu('v_sub_u32', t0, t0, t1),
          valu('v_mov_b32', V(SB + 3), 0xff800000)]
    for q in (0, 3):
        o += [salu('s_xor_b32', sTmp, sRH, 1 if q else 0), salu('s_lshl_b32', sTmp, sTmp, 4), valu('v_add_u32', t1, sTmp, t0)]
        for b in range(2):
            for r in range(4):
                o += [valu('v_cmp_le_i32', 'vcc', b * 16 + r, t1), valu('v_cndmask_b32', Cd(q, b)[r], V(SB + 3), Ci(q)[r], 'vcc')]
    return o

def epilogue():
    o = [lab('L2_E')]
    for db in range(8):
        for q in (2, 3):
            x = dsw('ds_write_b128', vMW, O(db, q), (db * 2 + q - 2) * 1024); x.lds = ('w', ('V', 1), 1); o.append(x)
    for q in (2, 3):
        x = dsw('ds_write_b32', vLW, Lq(q)[0], (q - 2) * 256); x.lds = ('w', ('V', 0), 1); o.append(x)
    o += [wait(lgkm=0), bar()]
    lp = [V(PB), V(PB + 1)]
    for q in range(2):
        x = dsr('ds_read_b32', lp[q], vLR, q * 256); x.lds = ('r', ('V', 0), 1, True); o.append(x)
    for i in range(16):
        x = dsr128(V(SB + 4 * i, 4), vMR, i * 1024); x.lds = ('r', ('V', 1), 1); o.append(x)
    o.append(wait(regs=lp + vG))
    o += dmahalf('V', 0, 0, sVn, CID) + dmahalf('V', 0, 1, sVn, CID)
    sc = [V(PB + 2, 2), V(PB + 4, 2)]
    for q in range(2): o.append(valu('v_add_f32', lp[q], lp[q], Lq(q)[0]))
    for q in range(2): o.append(valu('v_rcp_f32', sc[q][0], lp[q]))
    o += [valu('v_min_f32', V(PB + 6), lp[0], lp[1]), valu('v_max_f32', V(PB + 7), lp[0], lp[1]),
          valu('v_add_f32', vChk, lp[0], lp[1])]
    for q in range(2): o += [valu('v_mul_f32', sc[q][0], sc[q][0], vG[q]), valu('v_mov_b32', sc[q][1], sc[q][0])]
    o += [valu('v_cmp_gt_f32', 'vcc', f2u(2.0 ** -40), V(PB + 6)), salu('s_or_b32', sBad, sBad, 'vcc_lo'), salu('s_or_b32', sBad, sBad, 'vcc_hi'),
          valu('v_cmp_lt_f32', 'vcc', f2u(2.0 ** 64), V(PB + 7)), salu('s_or_b32', sBad, sBad, 'vcc_lo'), salu('s_or_b32', sBad, sBad, 'vcc_hi')]
    for x in o[-6:]:
        if x.k == 'salu': x.rd.add('vcc')
    for dp in range(4):
        for q in range(2):
            out = V(PB + 8 + 4 * ((dp * 2 + q) % 6), 4)
            for d in range(2):
                db = 2 * dp + d
                T = V(SB + 4 * (db * 2 + q), 4); Oq = O(db, q)
                if q == 0 and d == 0: o.append(wait(regs=[V(SB + 4 * (db * 2), 16)]))
                o += [valu('v_pk_add_f32', T[0:2], T[0:2], Oq[0:2]), valu('v_pk_add_f32', T[2:4], T[2:4], Oq[2:4]),
                      valu('v_pk_mul_f32', T[0:2], T[0:2], sc[q]), valu('v_pk_mul_f32', T[2:4], T[2:4], sc[q]),
                      valu('v_fma_f32', vChk, T[0], T[1], vChk), valu('v_fma_f32', vChk, T[2], T[3], vChk),
                      valu('v_cvt_pk_bf16_f32', out[2 * d], T[0], T[1]), valu('v_cvt_pk_bf16_f32', out[2 * d + 1], T[2], T[3])]
            o += [salu('s_add_u32', sD2, sCo[q], dp * GSTR), bstore(out, vL16, sWS, sD2, 0, fl=STFL)]
    o += [salu('s_mov_b32', sTmp, 0x207), valu('v_cmp_class_f32', 'vcc', vChk, sTmp),
          salu('s_or_b32', sBad, sBad, 'vcc_lo'), salu('s_or_b32', sBad, sBad, 'vcc_hi')]
    for x in o[-2:]: x.rd.add('vcc')
    return o

def maxpass():
    o = [lab('L2_max')]
    KF = [V(PB + 4 * i, 4) for i in range(4)]
    mx = [V(PB + 16 + q) for q in range(4)]; qi = [V(PB + 20 + q) for q in range(4)]
    t0, t1, ninf = V(PB + 24), V(PB + 25), V(PB + 26)
    sI, sE, sO = S(70), S(71), S(72)
    o += [wait(vm=0), valu('v_mov_b32', ninf, 0xff800000),
          valu('v_and_b32', t0, 15, vLane), valu('v_lshrrev_b32', t1, 4, vLane), valu('v_lshlrev_b32', t1, 2, t1), valu('v_sub_u32', t0, t0, t1)]
    for q in range(4):
        o += [salu('s_lshl_b32', sTmp, sT, 13), salu('s_add_u32', sTmp, sTmp, sGq[q]), salu('s_lshr_b32', sTmp, sTmp, 6),
              valu('v_add_u32', qi[q], sTmp, t0), valu('v_mov_b32', mx[q], ninf)]
    o += [salu('s_mov_b32', sI, 0), salu('s_add_u32', sE, sT, 1), salu('s_lshl_b32', sE, sE, 7),
          salu('s_mul_i32', sO, sH, 4 * GSTR), salu('s_add_u32', sO, sO, WS_K)]
    lp = [lab('L2_maxl')]
    for ks in range(4): lp += [salu('s_add_u32', sD2, sO, ks * GSTR), bload(KF[ks], vL16, sWS, sD2)]
    lp.append(wait(vm=0))
    for q in range(4):
        for ks in range(4): lp.append(mfma(St(0, q), KF[ks], Qf(ks, q), 0 if ks == 0 else None))
    for q in range(4):
        for r in range(4):
            lp += [salu('s_add_u32', sTmp, sI, r), valu('v_cmp_le_i32', 'vcc', sTmp, qi[q]),
                   valu('v_cndmask_b32', t0, ninf, St(0, q)[r], 'vcc'), valu('v_max_f32', mx[q], mx[q], t0)]
    lp += [salu('s_add_u32', sO, sO, 1024), salu('s_add_u32', sI, sI, 16), salu('s_cmp_lt_u32', sI, sE), br('s_cbranch_scc1', 'L2_maxl')]
    e = []
    for q in range(4):
        e += [valu('v_mov_b32', t0, mx[q]), valu('v_permlane32_swap_b32', mx[q], t0), valu('v_max_f32', mx[q], mx[q], t0),
              valu('v_mov_b32', t0, mx[q]), valu('v_permlane16_swap_b32', mx[q], t0), valu('v_max_f32', mx[q], mx[q], t0)]
        e += [valu('v_sub_f32', Ci(q)[r], 0, mx[q]) for r in range(4)]
    e += make_cd() + [br('s_branch', 'L2_go')]
    return o, lp, e

def gen_l2():
    head = [salu('s_cmp_ge_u32', S(2), 256), br('s_cbranch_scc1', 'L2_exit')] + stamp_begin() + [
        sload(sP, S(0, 2), 96),
        valu('v_lshrrev_b32', vT0, 6, V(0)), valu('v_and_b32', vLane, 63, V(0)),
        valu('v_readfirstlane_b32', sWave, vT0),
        salu('s_and_b32', sH, S(2), 31), salu('s_lshr_b32', sPp, S(2), 5),
        salu('s_and_b32', sRH, sWave, 1), salu('s_lshr_b32', sKH, sWave, 1),
        salu('s_lshl_b32', sM, sWave, 13),
        salu('s_lshl_b32', sTmp, sH, 2), salu('s_add_u32', sTmp, sTmp, sWave), salu('s_mul_i32', sTmp, sTmp, GSTR),
        salu('s_add_u32', sKb, sTmp, WS_K), salu('s_add_u32', sVb, sTmp, WS_V),
        valu('v_lshlrev_b32', vL16, 4, vLane), valu('v_add_u32', vL16b, 4096, vL16),
        salu('s_mov_b32', sBad, 0), salu('s_mov_b32', sSafe, 0)]
    for q in range(4):
        head += [salu('s_lshl_b32', sTmp, sKH, 1), salu('s_xor_b32', sTmp, sTmp, q), salu('s_add_u32', sD, sTmp, sRH), salu('s_and_b32', sD, sD, 1),
                 salu('s_lshl_b32', sTmp, sTmp, 1), salu('s_add_u32', sTmp, sTmp, sD), salu('s_lshl_b32', sGq[q], sTmp, 10)]
    head += [wait(lgkm=0)] + srd(sWS, sP, 256 << 20)
    start = [lab('L2_start'), salu('s_sub_u32', sT, 15, sPp), salu('s_mov_b32', sTn, sPp), salu('s_mov_b32', sPass, 0),
             salu('s_lshl_b32', sTmp, sT, 13), salu('s_add_u32', sD, sKb, sTmp), salu('s_add_u32', sVn, sVb, sTmp)]
    start += dmahalf('K', 0, 0, sD, CID) + dmahalf('K', 0, 1, sD, CID) + qoffs(sT) + qloads()
    start += dmahalf('K', 1, 0, sKb, CID) + dmahalf('K', 1, 1, sKb, CID) + dmahalf('V', 0, 0, sVn, CID) + dmahalf('V', 0, 1, sVn, CID)
    for c in range(2):
        start += [salu('s_mov_b32', sTmp, sKH) if c == 0 else salu('s_sub_u32', sTmp, 3, sKH),
                  salu('s_lshl_b32', sD, sTmp, 11), valu('v_add_u32', vK[c], sD, vL16),
                  salu('s_lshr_b32', sD, sTmp, 1), salu('s_lshl_b32', sD, sD, 12), salu('s_and_b32', sTmp, sTmp, 1), salu('s_lshl_b32', sTmp, sTmp, 10),
                  salu('s_add_u32', sD, sD, sTmp), salu('s_add_u32', sD, sD, VB0), valu('v_add_u32', vV[c], sD, vL16)]
    start += [salu('s_lshl_b32', sTmp, sWave, 14), salu('s_add_u32', sTmp, sTmp, MRG), valu('v_add_u32', vMW, sTmp, vL16),
              salu('s_xor_b32', sD, sWave, 2), salu('s_lshl_b32', sTmp, sD, 14), salu('s_add_u32', sTmp, sTmp, MRG), valu('v_add_u32', vMR, sTmp, vL16),
              valu('v_lshlrev_b32', vT0, 2, vLane),
              salu('s_lshl_b32', sTmp, sD, 13), salu('s_add_u32', sTmp, sTmp, VB0), valu('v_add_u32', vLW, sTmp, vT0),
              salu('s_add_u32', sTmp, sM, VB0), valu('v_add_u32', vLR, sTmp, vT0),
              valu('v_mov_b32', vT0, 0x3f803f80)]
    start += [valu('v_accvgpr_write_b32', ONES[i], vT0) for i in range(4)]
    start += [valu('v_mov_b32', V(CI + i), 0) for i in range(16)] + make_cd()
    tile = [lab('L2_tile')] + tile_setup() + [salu('s_cmp_lg_u32', sSafe, 0), br('s_cbranch_scc1', 'L2_max')]
    go = [lab('L2_go'), wait(tags=[('K', 0)], lgkm=0), bar(),
          salu('s_cmp_eq_u32', sT, 0), br('s_cbranch_scc1', 'L2_Z'), salu('s_cmp_eq_u32', sKH, 1), br('s_cbranch_scc1', 'L2_D1')]
    D = [seg_D1(0), [lab('L2_D1')] + seg_D1(1)]
    Hbd = [seg_Hb(0, 0, 'L2_H1'), seg_Hb(0, 1)]
    Ha = [seg_Ha(0), [lab('L2_H1')] + seg_Ha(1)]
    Hb = [seg_Hb(0, None, 'L2_H1'), seg_Hb(1)]
    Tbd = [[lab('L2_Td0')] + seg_Tb(0, 0, 'L2_Tc1'), [lab('L2_Td1')] + seg_Tb(0, 1, 'L2_Tc1')]
    Tb = [[lab('L2_T0')] + seg_Tb(0), [lab('L2_T1')] + seg_Tb(1)]
    Tc = [seg_Tc(0), [lab('L2_Tc1')] + seg_Tc(1, 'L2_E')]
    zsel = [lab('L2_Z'), salu('s_cmp_eq_u32', sKH, 1), br('s_cbranch_scc1', 'L2_Z1')]
    Z = [seg_Z(0), [lab('L2_Z1')] + seg_Z(1)]
    E = epilogue()
    nxt = [salu('s_mov_b32', sT, sTn), salu('s_add_u32', sPass, sPass, 1), salu('s_cmp_eq_u32', sPass, 1), br('s_cbranch_scc1', 'L2_tile')]
    fin = [salu('s_cmp_lg_u32', sSafe, 0), br('s_cbranch_scc1', 'L2_done'),
           wait(tags=[('K', 0), ('K', 1), ('V', 0)], lgkm=0), bar(),
           salu('s_lshl_b32', sTmp, sWave, 2), valu('v_mov_b32', vT0, sTmp), valu('v_mov_b32', vT1, sBad), dsw('ds_write_b32', vT0, vT1),
           valu('v_mov_b32', vT0, 0), wait(lgkm=0), bar(), dsr128(V(SB, 4), vT0, 0), wait(lgkm=0),
           valu('v_or_b32', V(SB), V(SB), V(SB + 1)), valu('v_or3_b32', V(SB), V(SB), V(SB + 2), V(SB + 3)),
           valu('v_readfirstlane_b32', sSafe, V(SB)), salu('s_cmp_eq_u32', sSafe, 0), br('s_cbranch_scc1', 'L2_done'),
           wait(vm=0), bar(), br('s_branch', 'L2_start')]
    done = [lab('L2_done')] + stamp_end(1, sWS, sWave) + [lab('L2_exit'), raw('s_endpgm', 'br')]
    m0, m1, m2 = maxpass()
    def tilepath(t, kh, safe=False):
        p = [tile] + ([m0, m1, m1, m2] if safe else []) + [go]
        if t == 0: return p + [zsel, Z[kh], E, nxt]
        p += [D[kh]]
        if t == 1: return p + [Tbd[kh], Tc[1], E, nxt]
        p += [Hbd[kh]]
        n = 1
        while True:
            p.append(Ha[n & 1])
            if n + 1 == t: break
            p.append(Hb[n & 1]); n += 1
        return p + [Tb[n & 1], Tc[(n & 1) ^ 1], E, nxt]
    paths = []
    for kh in range(2):
        for p in range(8):
            paths.append([head, start] + tilepath(15 - p, kh) + tilepath(p, kh) + [fin, done])
        paths.append([head, start] + tilepath(9, kh) + tilepath(0, kh) + [fin, start] + tilepath(8, kh, True) + tilepath(1, kh, True) + [fin, done])
    finish(paths, 'L2', verbose=False)
    for p in paths: verify_lds(p, 'L2')
    order = head + start + tile + go + D[0] + Hbd[0] + D[1] + Hbd[1] + Ha[1] + Hb[1] + Ha[0] + Hb[0] + Tbd[0] + Tbd[1] + Tb[0] + Tc[1] + \
        zsel + Z[0] + Z[1] + m0 + m1 + m2 + Tb[1] + Tc[0] + E + nxt + fin + done
    return text(order)

if __name__ == '__main__':
    t = gen_l2()
    print(len(t), t.count('\n'))
```

```python
from gemm import *

LDS = 3 * 53248
STG = 53248
SLAB = 32 * 4 * 18 * 1024
sW2, sWo, sWC, sWS = S(4, 4), S(8, 4), S(12, 4), S(16, 4)
sWave, sSl, sHf, sTT, sWt, sWc = S(24), S(25), S(26), S(27), S(28), S(29)
sS, sStop, sRo, sRoD = S(30), S(31), S(32), S(33)
sAo, sWoff, sWoff2, sT, sM4, sM1 = S(34), S(35), S(36), S(37), S(38), S(39)
sAoC, sWoffC = S(40), S(41)
sSt = [S(42 + i) for i in range(5)]
sP = S(48, 16)
OOB = 0x10000000
vLane = V(15)
vTRb = [V(1 + i) for i in range(4)]; vTSb, vARb = V(5), V(6)
vTR = [V(7 + i) for i in range(4)]; vTS, vAR = V(11), V(12)
vL16, vL16b = V(13), V(14)
vD = [V(16 + i) for i in range(4)]; vS = V(20)
vSC = [V(22 + 2 * i, 2) for i in range(4)]
ACC = 32
TMP = 176
def acc(cb, tb): return V(ACC + 4 * (cb * 4 + tb), 4)
def act(kl, tb): return A(4 * (tb * 2 + kl), 4)
def WF(cb, kl): return A(32 + 4 * (cb * 2 + kl), 4)

def wreads(grp):
    o = []
    for cb in range(3 * grp, 3 * grp + 3):
        for kl in range(2):
            for h in range(2):
                if cb < 8: x = tr(WF(cb, kl)[2 * h:2 * h + 2], vTR[cb & 3], kl * 16384 + (cb >> 2) * 4096 + h * 2048)
                else: x = tr(WF(cb, kl)[2 * h:2 * h + 2], vTS, kl * 2048 + h * 1024)
                o.append(x)
    return o
def areads(tb):
    return [dsr128(act(kl, tb), vAR, (tb >> 1) * 4096 + kl * 2048 + (tb & 1) * 1024) for kl in range(2)]

def dmas():
    g = []
    o = [salu('s_mov_b32', 'm0', sRoD)]
    o += [dma(vL16 if i < 2 else vL16b, sWS, sAo, i * 1024, tag='st') for i in range(4)]
    g.append(o)
    o = [salu('s_add_u32', 'm0', sRoD, sM1), dma(vS, sWC, sWoff, 0, tag='st')]
    g.append(o)
    for kl in range(2):
        o = [salu('s_add_u32', 'm0', sRoD, 16384 + kl * 16384)]
        if kl: o.append(salu('s_add_u32', sWoff2, sWoff, 32 * 1152))
        o += [dma(vD[i], sWC, sWoff2 if kl else sWoff, i * 1024, tag='st') for i in range(4)]
        g.append(o)
    return g
def advance():
    return [salu('s_add_u32', sRoD, sRo, sM4), salu('s_add_u32', sRo, sRo, STG), salu('s_cmp_eq_u32', sRo, LDS), salu('s_cselect_b32', sRo, 0, sRo)]
def advance2():
    return [salu('s_add_u32', sAo, sAo, 2 * GSTR), salu('s_add_u32', sWoff, sWoff, 64 * 1152),
            salu('s_cmp_eq_u32', sS, 6),
            salu('s_cselect_b32', sAo, sAoC, sAo), salu('s_cselect_b32', sWoff, sWoffC, sWoff),
            salu('s_cselect_b32', sWC[0], sWo[0], sWC[0]), salu('s_cselect_b32', sWC[1], sWo[1], sWC[1]), salu('s_cselect_b32', sWC[2], sWo[2], sWC[2]),
            salu('s_cmp_eq_u32', sS, 14),
            salu('s_cselect_b32', sAo, OOB, sAo), salu('s_cselect_b32', sWoff, OOB, sWoff),
            salu('s_add_u32', sS, sS, 1)]
def vadv():
    return [valu('v_add_u32', d, sRo, b) for d, b in zip([vTR[0], vTR[1], vTR[2], vAR, vTR[3], vTS], [vTRb[0], vTRb[1], vTRb[2], vARb, vTRb[3], vTSb])]

BAR = 44
def body(kind):
    bb = []; first = {}; last = {}
    for grp in range(3):
        for tb in range(4):
            for cb in range(3 * grp, 3 * grp + 3):
                first[(cb, tb)] = len(bb)
                for kl in range(2): bb.append(mfma(acc(cb, tb), WF(cb, kl), act(kl, tb)))
                last[(cb, tb)] = len(bb) - 1
    n = len(bb)
    forced = {}; rs = []; ms = []; xs = []
    F = lambda g, it: forced.setdefault(g, []).extend(it)
    W = lambda grp: [WF(cb, kl) for cb in range(3 * grp, 3 * grp + 3) for kl in range(2)]
    F(0, [wait(regs=W(0) + [act(0, 0), act(1, 0)])])
    for tb in range(1, 4): F(6 * tb, [wait(regs=[act(0, tb), act(1, tb)])])
    F(24, [wait(regs=W(1))])
    for x in areads(3): rs.append((x, 1, 3))
    for i, x in enumerate(wreads(1)): rs.append((x, 2 + i, 18))
    for i, x in enumerate(wreads(2)): rs.append((x, 16 + i * 2, BAR - 5))
    g = dmas()
    if kind != 'F':
        F(BAR, [wait(regs=W(2), vm=13), bar()])
        for x in vadv(): rs.append((x, BAR + 1, BAR + 5))
        w0 = wreads(0)
        seq = [(x, BAR + 4 + i) for i, x in enumerate(w0[:6])] + [(x, 55) for x in areads(0)] + [(x, 57 + i) for i, x in enumerate(w0[6:])] + \
              [(x, 61) for x in areads(1)] + [(x, 67) for x in areads(2)]
        seq.sort(key=lambda t: t[1])
        for x, e in seq: rs.append((x, e, e + 3))
        def mem(items, g0, step):
            for x in items:
                ms.append((x, g0, g0 + 4) if x.k in VM else (x, max(g0 - 2, 0), g0 - 1))
                if x.k in VM: g0 += step
            return g0
        mem(g[2] + g[3], 2, 4)
        for x in advance2() + advance(): ms.append((x, 30, BAR))
        mem(g[0] + g[1], BAR + 4, 5)
    else:
        F(48, [wait(regs=W(2))])
    if kind == 'S':
        for grp in range(3):
            for tb in range(4):
                for cb in range(3 * grp, 3 * grp + 3):
                    d = max(first[(cb, tb)] - 1, 0)
                    a = acc(cb, tb)
                    for h in range(2): xs.append((valu('v_pk_mul_f32', a[2 * h:2 * h + 2], a[2 * h:2 * h + 2], vSC[tb]), max(0, d - 8), d))
        xs.sort(key=lambda t: t[2])
    if kind == 'F':
        ev = []
        for tb in range(4):
            for p in range(4): ev.append((last[(2 * p + 1, tb)], [(2 * p, tb), (2 * p + 1, tb)], sSt[tb], p * 1024))
        for p in range(2): ev.append((last[(8, 2 * p + 1)], [(8, 2 * p), (8, 2 * p + 1)], sSt[4], p * 1024))
        ev.sort(key=lambda t: t[0])
        for j, (l, tiles, so, io) in enumerate(ev):
            out = V(TMP + 4 * j, 4)
            e = min(l + 5, n)
            for q, t in enumerate(tiles):
                a = acc(*t)
                xs += [(valu('v_cvt_pk_bf16_f32', out[2 * q], a[0], a[1]), e, n), (valu('v_cvt_pk_bf16_f32', out[2 * q + 1], a[2], a[3]), e, n)]
            xs.append((bstore(out, vL16, sWS, so, io, fl=STFL), e, n))
    clip = lambda st: [(x, min(e, n), min(d, n)) for x, e, d in st]
    print("L3", kind, end="")
    return schedule(bb, forced, [clip(rs), clip(ms), clip(xs)], verbose=1)

def gen_l3():
    P = lambda i: sP[2 * i:2 * i + 2]
    t0, t1, t2 = V(TMP), V(TMP + 1), V(TMP + 2)
    head = [salu('s_cmp_ge_u32', S(2), 256), br('s_cbranch_scc1', 'L3_exit')] + stamp_begin() + [
        sload(P(0), S(0, 2), 40), sload(P(1), S(0, 2), 64), sload(P(2), S(0, 2), 96),
        valu('v_lshrrev_b32', t0, 6, V(0)), valu('v_and_b32', vLane, 63, V(0)),
        valu('v_readfirstlane_b32', sWave, t0),
        salu('s_and_b32', sSl, S(2), 7), salu('s_bfe_u32', sHf, S(2), 3 | (1 << 16)), salu('s_lshr_b32', sTT, S(2), 4),
        salu('s_and_b32', sWt, sWave, 1), salu('s_lshr_b32', sWc, sWave, 1),
        salu('s_lshl_b32', sM4, sWave, 12), salu('s_mul_i32', sM1, sWave, 3072), salu('s_sub_u32', sM1, 49152, sM1),
        valu('v_lshlrev_b32', vL16, 4, vLane), valu('v_add_u32', vL16b, GSTR - 2048, vL16),
        salu('s_lshl_b32', sT, sTT, 13), salu('s_lshl_b32', sAo, sWave, 11), salu('s_add_u32', sT, sT, sAo),
        salu('s_mul_i32', sAo, sSl, 18 * GSTR), salu('s_add_u32', sAo, sAo, sT), salu('s_add_u32', sAo, sAo, WS_H),
        salu('s_mul_i32', sAoC, sSl, 16 * GSTR), salu('s_add_u32', sAoC, sAoC, sT), salu('s_add_u32', sAoC, sAoC, WS_CTX),
        salu('s_mul_i32', sWoff, sSl, 18 * 32 * 1152), salu('s_mul_i32', sWoffC, sSl, 16 * 32 * 1152),
        valu('v_lshrrev_b32', t0, 3, vLane), valu('v_and_b32', t1, 6, t0), valu('v_and_b32', t2, 7, vLane), valu('v_xor_b32', t1, t1, t2),
        valu('v_lshlrev_b32', t1, 4, t1), salu('s_movk_i32', sT, 1152), valu('v_mad_u32_u24', vD[0], t0, sT, t1),
        salu('s_mul_i32', sT, sHf, 640), salu('s_lshl_b32', sS, sWave, 7), salu('s_add_u32', sT, sT, sS), valu('v_add_u32', vD[0], sT, vD[0])]
    head += [valu('v_add_u32', vD[i], i * (9216 - 1024), vD[0]) for i in range(1, 4)]
    head += [valu('v_lshrrev_b32', t0, 2, vLane), valu('v_lshrrev_b32', t1, 3, vLane), valu('v_and_b32', t1, 2, t1), valu('v_and_b32', t2, 3, vLane),
             valu('v_xor_b32', t1, t1, t2), valu('v_lshlrev_b32', t1, 4, t1), salu('s_movk_i32', sT, 1152), valu('v_mad_u32_u24', vS, t0, sT, t1),
             salu('s_mul_i32', sT, sWave, 16 * 1152), salu('s_lshl_b32', sS, sHf, 6), salu('s_add_u32', sT, sT, sS), salu('s_add_u32', sT, sT, 512),
             valu('v_add_u32', vS, sT, vS),
             salu('s_mov_b32', sRoD, sM4),
             wait(lgkm=0)]
    head += srd(sWS, P(2), 256 << 20) + srd(sWC, P(1), 4608 * 1152) + srd(sWo, P(0), 4096 * 1152)
    def stage(parts):
        g = dmas(); o = []
        for p in parts: o += g[p]
        return o
    nxt = lambda: [salu('s_add_u32', sAo, sAo, 2 * GSTR), salu('s_add_u32', sWoff, sWoff, 64 * 1152), salu('s_add_u32', sRoD, sRoD, STG)]
    head += stage([2, 0, 3, 1]) + nxt() + stage([2, 0, 3, 1]) + nxt() + stage([0, 1])
    head += [valu('v_and_b32', t0, 15, vLane), valu('v_lshlrev_b32', t0, 2, t0),
             salu('s_lshl_b32', sT, sTT, 1), salu('s_add_u32', sT, sT, sWt), salu('s_lshl_b32', sSt[0], sT, 8), salu('s_add_u32', sSt[0], sSt[0], WS_G + 8192)]
    head += [bload(vSC[tb][0], t0, sWS, sSt[0], tb * 64, tag='g') for tb in range(4)]
    head += [salu('s_lshl_b32', sT, sT, 1), salu('s_add_u32', sT, sT, sHf), salu('s_lshl_b32', sT, sT, 1), salu('s_add_u32', sT, sT, sWc),
             salu('s_mul_i32', sT, sT, 18 * 1024), salu('s_mul_i32', sSt[1], sSl, SLAB), salu('s_add_u32', sT, sT, sSt[1])]
    head += [salu('s_add_u32', sSt[i], sT, WS_P + i * 4096) for i in range(5)]
    g_, r_ = V(TMP + 3), V(TMP + 4)
    head += [valu('v_lshrrev_b32', t0, 2, vLane),
             valu('v_and_b32', t1, 6, t0), valu('v_lshlrev_b32', t1, 4, t1),
             valu('v_and_b32', t2, 3, vLane), valu('v_lshlrev_b32', t2, 3, t2),
             valu('v_lshlrev_b32', g_, 7, t0), valu('v_add3_u32', vTRb[0], g_, t1, t2),
             salu('s_lshl_b32', sT, sWc, 13), salu('s_add_u32', sT, sT, 16384), valu('v_add_u32', vTRb[0], sT, vTRb[0])]
    head += [valu('v_xor_b32', vTRb[i], i * 32, vTRb[0]) for i in range(1, 4)]
    head += [valu('v_lshlrev_b32', g_, 6, t0), valu('v_bfe_u32', t1, vLane, 4, 1), valu('v_xor_b32', t1, sWc, t1), valu('v_lshlrev_b32', t1, 5, t1),
             valu('v_add3_u32', vTSb, g_, t1, t2), valu('v_add_u32', vTSb, 49152, vTSb),
             salu('s_lshl_b32', sT, sWt, 13), valu('v_add_u32', vARb, sT, vL16),
             salu('s_mov_b32', sRo, 0), salu('s_mov_b32', sS, 0), salu('s_mov_b32', sStop, 9)]
    head += vadv()
    head += [valu('v_mov_b32', V(ACC + i), 0) for i in range(144)]
    head += [wait(vm=13 + 5 + 4), bar()] + wreads(0)[:4] + areads(0) + wreads(0)[4:] + areads(1) + areads(2)
    L = [lab('L3_L')] + body('L') + [salu('s_cmp_lg_u32', sS, sStop), br('s_cbranch_scc1', 'L3_L')]
    sel = [salu('s_cmp_eq_u32', sS, 16), br('s_cbranch_scc1', 'L3_F'), salu('s_mov_b32', sStop, 16)] + [valu('v_mov_b32', vSC[tb][1], vSC[tb][0]) for tb in range(4)]
    Sb = body('S') + [br('s_branch', 'L3_L')]
    Fb = [lab('L3_F')] + body('F') + stamp_end(2, sWS, sWave) + [lab('L3_exit'), raw('s_endpgm', 'br')]
    paths = [[head] + [L] * 9 + [sel, Sb] + [L] * 6 + [sel[:2], Fb]]
    finish(paths, 'L3', verbose=True)
    return text(head + L + sel + Sb + Fb)

if __name__ == '__main__':
    t = gen_l3()
    print(len(t), t.count('\n'))
    open('l3_dbg.s', 'w').write(t)
```

```python
from gemm import *
from l3 import SLAB
GRID = 576
def gen_l4():
    sWS, sO = S(16, 4), S(12, 4)
    sW, sTq, sJ, sT, sA, sB, sC, sWave = [S(24 + i) for i in range(8)]
    sP = S(40, 8)
    vL, vO = V(1), V(2)
    D = lambda s: V(8 + 4 * s, 4)
    o = [salu('s_cmp_ge_u32', S(2), GRID), br('s_cbranch_scc1', 'L4_exit')] + stamp_begin() + [
        sload(sP[0:2], S(0, 2), 80), sload(sP[2:4], S(0, 2), 96),
        valu('v_lshrrev_b32', V(3), 6, V(0)), valu('v_and_b32', V(4), 63, V(0)), valu('v_readfirstlane_b32', sWave, V(3)),
        valu('v_lshlrev_b32', vL, 4, V(4)),
        salu('s_lshl_b32', sW, S(2), 2), salu('s_add_u32', sW, sW, sWave), salu('s_lshl_b32', sT, sW, 10), salu('s_add_u32', sT, sT, WS_P),
        wait(lgkm=0)] + srd(sWS, sP[2:4], 256 << 20)
    for s in range(8):
        o += [bload(D(s), vL, sWS, sT)]
        if s < 7: o.append(salu('s_add_u32', sT, sT, SLAB))
    o += srd(sO, sP[0:2], 2048 * 576 * 2)
    o += [salu('s_mul_i32', sTq, sW, 3641), salu('s_lshr_b32', sTq, sTq, 16), salu('s_mul_i32', sT, sTq, 18), salu('s_sub_u32', sJ, sW, sT),
          salu('s_lshr_b32', sA, sJ, 2), salu('s_mul_i32', sA, sA, 16 * 1152), salu('s_and_b32', sT, sJ, 3), salu('s_lshl_b32', sT, sT, 6), salu('s_add_u32', sA, sA, sT),
          salu('s_bfe_u32', sT, sTq, 1 | (1 << 16)), salu('s_mul_i32', sT, sT, 640), salu('s_add_u32', sA, sA, sT),
          salu('s_and_b32', sT, sTq, 1), salu('s_lshl_b32', sT, sT, 8), salu('s_add_u32', sA, sA, sT),
          salu('s_and_b32', sB, sJ, 1), salu('s_mul_i32', sB, sB, 32 * 1152), salu('s_and_b32', sT, sTq, 3), salu('s_lshl_b32', sT, sT, 5),
          salu('s_add_u32', sB, sB, sT), salu('s_add_u32', sB, sB, 512),
          salu('s_cmp_lt_u32', sJ, 16), salu('s_cselect_b32', sA, sA, sB), salu('s_cselect_b32', sC, 32, 16 * 1152),
          salu('s_lshr_b32', sT, sTq, 2), salu('s_mul_i32', sT, sT, 64 * 1152), salu('s_add_u32', sA, sA, sT), salu('s_add_u32', sB, sA, sC),
          valu('v_and_b32', V(3), 15, V(4)), valu('v_lshrrev_b32', V(4), 4, V(4)), valu('v_lshlrev_b32', V(4), 3, V(4)),
          salu('s_movk_i32', sT, 1152), valu('v_mad_u32_u24', vO, V(3), sT, V(4))]
    accr = V(48, 8); t = V(56, 8)
    for s in range(8):
        o.append(wait(regs=[D(s)]))
        dst = accr if s == 0 else t
        for i in range(4):
            o += [valu('v_lshlrev_b32', dst[2 * i], 16, D(s)[i]), valu('v_and_b32', dst[2 * i + 1], 0xffff0000, D(s)[i])]
        if s: o += [valu('v_pk_add_f32', accr[2 * i:2 * i + 2], accr[2 * i:2 * i + 2], t[2 * i:2 * i + 2]) for i in range(4)]
    o += [valu('v_cvt_pk_bf16_f32', V(8 + i), accr[2 * i], accr[2 * i + 1]) for i in range(4)]
    o += [bstore(V(8, 2), vO, sO, sA), bstore(V(10, 2), vO, sO, sB)]
    o += stamp_end(3, sWS, sWave) + [lab('L4_exit'), raw('s_endpgm', 'br')]
    finish([[o]], 'L4', verbose=True)
    return text(o)
if __name__ == '__main__':
    print(gen_l4())
```

```python
import sys
from fw import *
import l1
NAME = "gated_mix__compressed_kv_cla__dense_activation_silu__prompt"
def build(kernels, path):
    ref = open(f"cdna_kernels/{NAME}.s.ref").read().split("\n")
    hdr = [l for l in ref if l.startswith(";") and "@launch" not in l and "Override" not in l and "grid=ceil" not in l]
    s = "\n".join(hdr) + "\n"
    for k in kernels:
        s += f"; @launch kernel={k['name']} grid=({k['grid']},1,1) block=({k['block']},1,1) lds={k['lds']}\n"
    s += '.amdgcn_target "amdgcn-amd-amdhsa--gfx950"\n.text\n' + MACROS
    for k in kernels:
        s += khead(k['name']) + k['text']
    s += '.section .rodata,"a"\n'
    for k in kernels:
        s += KD.format(name=k['name'], nvgpr=k['nvgpr'], accum=k['accum'])
    open(path, "w").write(s)
    print("wrote", path, len(s))
if __name__ == '__main__':
    which = sys.argv[2] if len(sys.argv) > 2 else "1234"
    ks = []
    if '1' in which: ks.append(dict(name="l1_kernel", grid=256, block=256, lds=163840, nvgpr=512, accum=256, text=l1.gen_l1()))
    if '2' in which:
        import l2
        ks.append(dict(name="l2_kernel", grid=256, block=256, lds=163840, nvgpr=512, accum=256, text=l2.gen_l2()))
    if 'm' in which:
        import m23
        ks.append(dict(name="m_kernel", grid=256, block=256, lds=163840, nvgpr=512, accum=256, text=m23.gen_m()))
    if '3' in which:
        import l3
        ks.append(dict(name="l3_kernel", grid=256, block=256, lds=l3.LDS, nvgpr=512, accum=256, text=l3.gen_l3()))
    if '4' in which:
        import l4
        ks.append(dict(name="l4_kernel", grid=l4.GRID, block=256, lds=0, nvgpr=64, accum=64, text=l4.gen_l4()))
    build(ks, sys.argv[1])
```

```python
import re

class Ins:
    __slots__ = ('t', 'k', 'rd', 'wr', 'cost', 'tag', 'need', 'C', 'AB', 'n_lgkm', 'n_vm', 'lds')
    def __init__(s, t, k, rd=(), wr=(), cost=1, tag=None):
        s.t = t; s.k = k; s.rd = set(rd); s.wr = set(wr); s.cost = cost; s.tag = tag
        s.need = None; s.C = None; s.AB = None; s.n_lgkm = None; s.n_vm = None; s.lds = None
    def __repr__(s): return s.t

def R(kind, first, n=1):
    return [f"{kind}{first+i}" for i in range(n)]

class Reg:
    def __init__(s, kind, first, n=1): s.kind = kind; s.first = first; s.n = n
    def __str__(s):
        return f"{s.kind}{s.first}" if s.n == 1 else f"{s.kind}[{s.first}:{s.first+s.n-1}]"
    def regs(s): return R(s.kind, s.first, s.n)
    def __getitem__(s, i):
        if isinstance(i, slice):
            a = i.start or 0; b = i.stop if i.stop is not None else s.n
            assert 0 <= a < b <= s.n
            return Reg(s.kind, s.first + a, b - a)
        assert 0 <= i < s.n
        return Reg(s.kind, s.first + i, 1)
def V(f, n=1): return Reg('v', f, n)
def A(f, n=1): return Reg('a', f, n)
def S(f, n=1): return Reg('s', f, n)

def _regs(x):
    if isinstance(x, Reg): return x.regs()
    if isinstance(x, str):
        y = x.strip('-|')
        if y in ('vcc', 'exec', 'm0', 'scc'): return [y]
        m = re.fullmatch(r'([vas])(\d+)', y)
        if m: return [y]
    return []

def fmt(x):
    if isinstance(x, float): return repr(x)
    if isinstance(x, int):
        return str(x) if -16 <= x <= 64 else hex(x & 0xffffffff)
    return str(x)

def mfma(D, Aop, Bop, C=None):
    if C is None: C = D
    if C is D or (isinstance(C, Reg) and C.kind == D.kind and C.first == D.first):
        t = f"M{D.kind}{Aop.kind}{Bop.kind} {D.first},{Aop.first},{Bop.first}"
    elif isinstance(C, int):
        t = f"Z{D.kind}{Aop.kind}{Bop.kind} {D.first},{Aop.first},{Bop.first}"
    else:
        assert C.kind == D.kind
        t = f"C{D.kind}{Aop.kind}{Bop.kind} {D.first},{Aop.first},{Bop.first},{C.first}"
    rd = Aop.regs() + Bop.regs() + _regs(C)
    i = Ins(t, 'mfma', rd, D.regs(), cost=2)
    i.C = tuple(_regs(C)); i.AB = set(Aop.regs() + Bop.regs())
    return i

MACROS = ""
for d in 'va':
    for a in 'va':
        for b in 'va':
            MACROS += f".macro M{d}{a}{b} d,a,b\n v_mfma_f32_16x16x32_bf16 {d}[\\d:\\d+3], {a}[\\a:\\a+3], {b}[\\b:\\b+3], {d}[\\d:\\d+3]\n.endm\n"
            MACROS += f".macro Z{d}{a}{b} d,a,b\n v_mfma_f32_16x16x32_bf16 {d}[\\d:\\d+3], {a}[\\a:\\a+3], {b}[\\b:\\b+3], 0\n.endm\n"
            MACROS += f".macro C{d}{a}{b} d,a,b,c\n v_mfma_f32_16x16x32_bf16 {d}[\\d:\\d+3], {a}[\\a:\\a+3], {b}[\\b:\\b+3], {d}[\\c:\\c+3]\n.endm\n"
for d in 'va':
    MACROS += f".macro T{d} d,p,o\n ds_read_b64_tr_b16 {d}[\\d:\\d+1], v\\p offset:\\o\n.endm\n"
    MACROS += f".macro L{d} d,p,o\n ds_read_b128 {d}[\\d:\\d+3], v\\p offset:\\o\n.endm\n"
MACROS += ".macro PK d,a,b\n v_cvt_pk_bf16_f32 v\\d, v\\a, v\\b\n.endm\n"

TRANS = ('v_exp_f32', 'v_rcp_f32', 'v_log_f32', 'v_rsq_f32', 'v_sqrt_f32')
def valu(op, dst, *src, extra_rd=(), extra_wr=(), mods=""):
    k = 'trans' if op in TRANS else 'valu'
    if op.startswith('v_permlane'): k = 'perm'
    if op.startswith('v_readfirstlane') or op.startswith('v_readlane'): k = 'rfl'
    rd = list(extra_rd)
    for x in src: rd += _regs(x)
    wr = _regs(dst) + list(extra_wr)
    if k == 'perm':
        rd += _regs(dst); wr += _regs(src[0])
    if op.startswith('v_fmac') or op.startswith('v_dot2c'): rd += _regs(dst)
    if op == 'v_cvt_pk_bf16_f32' and all(isinstance(x, Reg) and x.kind == 'v' for x in (dst,) + src):
        t = f"PK {dst.first},{src[0].first},{src[1].first}"
    else:
        t = f"{op} {fmt(dst)}, " + ", ".join(fmt(x) for x in src) + mods
    return Ins(t, k, rd, wr, cost=2 if k == 'trans' else 1)

def salu(op, dst, *src):
    rd = []
    for x in src: rd += _regs(x)
    wr = _regs(dst)
    if op.startswith('s_cmp'):
        rd += _regs(dst); wr = ['scc']
    elif op.startswith('s_cselect') or op.startswith('s_addc') or op.startswith('s_subb'):
        rd.append('scc')
    if op.split('_')[1] in ('add', 'sub', 'addc', 'subb', 'and', 'or', 'xor', 'lshl', 'lshr', 'min', 'max', 'bfe', 'ashr', 'andn2'): wr = wr + ['scc']
    t = f"{op} {fmt(dst)}" + "".join(", " + fmt(x) for x in src)
    return Ins(t, 'salu', rd, wr)

def tr(dst, addr, off):
    assert dst.n == 2 and 0 <= off < 65536
    i = Ins(f"T{dst.kind} {dst.first},{addr.first},{off}", 'dsr', addr.regs(), dst.regs())
    return i
def dsr128(dst, addr, off):
    assert dst.n == 4 and 0 <= off < 65536
    return Ins(f"L{dst.kind} {dst.first},{addr.first},{off}", 'dsr', addr.regs(), dst.regs())
def dsr(op, dst, addr, off=0):
    return Ins(f"{op} {dst}, {addr} offset:{off}", 'dsr', addr.regs(), dst.regs())
def dsw(op, addr, src, off=0):
    assert 0 <= off < 65536
    return Ins(f"{op} {addr}, {src} offset:{off}", 'dsw', addr.regs() + src.regs(), ())
def bload(dst, voff, srd, soff, off=0, tag=None, fl=""):
    op = {1: 'buffer_load_dword', 2: 'buffer_load_dwordx2', 4: 'buffer_load_dwordx4'}[dst.n]
    assert 0 <= off < 4096
    o = f" offset:{off}" if off else ""
    return Ins(f"{op} {dst}, {voff}, {srd}, {fmt(soff)} offen{o}{fl}", 'vld', voff.regs() + srd.regs() + _regs(soff), dst.regs(), tag=tag)
def bstore(src, voff, srd, soff, off=0, tag=None, fl=""):
    op = {1: 'buffer_store_dword', 2: 'buffer_store_dwordx2', 4: 'buffer_store_dwordx4'}[src.n]
    assert 0 <= off < 4096
    o = f" offset:{off}" if off else ""
    i = Ins(f"{op} {src}, {voff}, {srd}, {fmt(soff)} offen{o}{fl}", 'vst', src.regs() + voff.regs() + srd.regs() + _regs(soff), (), tag=tag)
    i.AB = set(src.regs()) if src.n >= 3 else set()
    return i
def dma(voff, srd, soff, off=0, tag=None, fl=""):
    assert 0 <= off < 4096
    o = f" offset:{off}" if off else ""
    return Ins(f"buffer_load_dwordx4 {voff}, {srd}, {fmt(soff)} offen{o}{fl} lds", 'dma', voff.regs() + srd.regs() + _regs(soff) + ['m0'], (), tag=tag)
def sload(dst, base, off):
    op = {1: 's_load_dword', 2: 's_load_dwordx2', 4: 's_load_dwordx4', 8: 's_load_dwordx8'}[dst.n]
    return Ins(f"{op} {dst}, {base}, {off}", 'smem', base.regs(), dst.regs())
def wait(regs=(), tags=(), lgkm=None, vm=None):
    i = Ins("s_waitcnt ?", 'wait')
    rs = set()
    for x in regs: rs.update(_regs(x))
    i.need = (rs, set(tags)); i.n_lgkm = lgkm; i.n_vm = vm
    return i
def bar(): return Ins("s_barrier", 'bar')
def lab(n): return Ins(f"{n}:", 'lab', cost=0)
def br(op, target): return Ins(f"{op} {target}", 'br', ['scc'] if 'scc' in op else (['vcc'] if 'vcc' in op else []))
def nop(n): return Ins(f"s_nop {n}", 'nop')
def raw(t, k='salu', rd=(), wr=()): return Ins(t, k, rd, wr)

def klass(i):
    k = i.k
    if k in ('valu', 'trans', 'perm', 'rfl'): return 2
    if k in ('dsr', 'dsw', 'vld', 'vst', 'dma'): return 1
    return 0
def gap_len(items, after_mfma=True):
    t = 4 if after_mfma else 0; vfree = 8 if after_mfma else 0
    vend = -100; send = -100; ready = 16 if after_mfma else 0; nl = 0
    for i in items:
        k = i.k
        if k == 'lab': continue
        if k == 'nop': t += 4 * (int(i.t.split()[1]) + 1)
        elif k == 'wait': t += 4
        elif k == 'bar': t += 8
        elif k in ('salu', 'br', 'smem'): t += 4; send = t
        elif k in ('valu', 'perm', 'rfl', 'trans'):
            t = max(t, vfree)
            if i.t.startswith('v_pk_') or i.t.startswith('v_dot'): t = max(t, 24 if after_mfma else 0); ready = max(ready, t + 8)
            t += 8 if k == 'trans' else 4
            vend = t
        elif k in ('dsr', 'dsw'):
            t = max(t, vfree, vend + 8) + 4 + (4 if nl else 0); nl += 1
            if k == 'dsw': t += 4 * (len(i.rd) - 1)
        else:
            t = max(t, vfree, vend + 8, send + 4)
            if k == 'vst': ready = max(ready, t + 4 + 4 * max(1, len(i.rd) - 6))
            t += 8
    return max(t, ready)

def sim(seq):
    tot = 0; cur = []; first = True; n = 0
    for i in seq:
        if i.k == 'mfma':
            tot += gap_len(cur, not first); cur = []; first = False; n += 1
        else: cur.append(i)
    tot += gap_len(cur, not first)
    return tot, n

def schedule(backbone, forced, streams, cap=2, verbose=False, vmgap=3):
    n = len(backbone)
    pos = [0] * len(streams)
    st = []
    for s in streams:
        s = [list(x) for x in s]
        for i in range(len(s) - 2, -1, -1):
            s[i][2] = min(s[i][2], s[i + 1][2])
        for i in range(1, len(s)):
            s[i][1] = max(s[i][1], s[i - 1][1])
        soft = 1e9
        for i in range(len(s) - 1, -1, -1):
            w = {'trans': 1.0, 'valu': 0.5, 'dma': 1.0, 'vld': 1.0, 'vst': 1.0, 'dsr': 1.0, 'dsw': 1.0}.get(s[i][0].k, 0.34)
            soft = min(s[i][2] + 0.99, soft) - w
            s[i].append(soft)
        for x in s:
            assert x[1] <= x[2], (x[0].t, x[1], x[2])
        st.append(s)
    out = []
    over = 0
    lastvm = -100
    def arrange(fx, ch):
        best = None
        for order in (sorted(ch, key=lambda c: klass(c[0])), ch):
            ok = True
            for k in set(c[1] for c in ch):
                if [c[0] for c in order if c[1] == k] != [c[0] for c in ch if c[1] == k]: ok = False
            if not ok: continue
            L = gap_len(fx + [c[0] for c in order])
            if best is None or L < best[0]: best = (L, order)
        return best
    for g in range(n + 1):
        fx = list(forced.get(g, []))
        ch = []
        cur = gap_len(fx)
        while True:
            best = None
            heads = [(k, s[pos[k]]) for k, s in enumerate(st) if pos[k] < len(s) and s[pos[k]][1] <= g]
            havev = any(h[0].k == 'valu' for k, h in heads)
            empty = not any(klass(c[0]) for c in ch)
            for k, (ins, e, d, soft) in heads:
                must = d <= g or g == n
                L, order = arrange(fx, ch + [(ins, k)])
                fits = L <= cur
                if ins.k == 'vst' and not ch and gap_len(fx + [ins]) <= 28: fits = True
                if ins.k in ('vld', 'vst', 'dma') and g - lastvm < vmgap: fits = False
                if not (must or fits): continue
                if must: c = 0
                elif soft <= g + 1: c = 1
                elif not empty: c = 2
                elif ins.k in ('vld', 'vst', 'dma'): c = 2
                elif klass(ins) == 0: c = 3
                elif klass(ins) == 1 and havev: c = 4
                elif ins.k == 'trans': c = 5
                else: c = 6
                key = (c, soft, k)
                if best is None or key < best[0]: best = (key, k, L, order)
            if best is None: break
            _, k, cur, ch = best
            ch = list(ch)
            if st[k][pos[k]][0].k in ('vld', 'vst', 'dma'): lastvm = g
            pos[k] += 1
        out += fx + [c[0] for c in ch]
        if 0 < g < n and cur > 16:
            over += cur - 16
            if verbose > 1: print('   over at', g, cur, [i.t[:14] for i in fx + [c[0] for c in ch]])
        if g == n and verbose: print(f"  sched: {n} mfma, overflow cycles {over}, tail cycles {cur}")
        if g < n: out.append(backbone[g])
    for k, s in enumerate(st): assert pos[k] == len(s)
    return out

LG = ('dsr', 'dsw')
VM = ('vld', 'vst', 'dma')
def flat(path):
    o = []
    for seg in path: o += seg
    return o

def resolve_waits(paths):
    for path in paths:
        seq = flat(path)
        for idx, ins in enumerate(seq):
            if ins.k != 'wait': continue
            regs, tags = ins.need
            if regs or tags:
                cl = cv = 0
                fl = fv = False
                for j in range(idx - 1, -1, -1):
                    p = seq[j]
                    if p.k in LG:
                        if not fl and (p.wr & regs or (p.tag is not None and p.tag in tags)):
                            fl = True
                            n = min(cl, 15)
                            ins.n_lgkm = n if ins.n_lgkm is None else min(ins.n_lgkm, n)
                        cl += 1
                    elif p.k in VM:
                        if not fv and (p.wr & regs or (p.tag is not None and p.tag in tags)):
                            fv = True
                            n = min(cv, 63)
                            ins.n_vm = n if ins.n_vm is None else min(ins.n_vm, n)
                        cv += 1
                    if (fl or cl > 64) and (fv or cv > 200): break
    for path in paths:
        for ins in flat(path):
            if ins.k == 'wait':
                t = "s_waitcnt"
                if ins.n_vm is not None: t += f" vmcnt({ins.n_vm})"
                if ins.n_lgkm is not None: t += f" lgkmcnt({ins.n_lgkm})"
                if t == "s_waitcnt": t = "s_nop 0"
                ins.t = t

def verify_waits(paths, name=""):
    for path in paths:
        lq = []; vq = []; sm = set()
        for ins in flat(path):
            if ins.k == 'wait':
                if ins.n_lgkm is not None:
                    while len(lq) > ins.n_lgkm: lq.pop(0)
                    if ins.n_lgkm == 0: sm = set()
                if ins.n_vm is not None:
                    while len(vq) > ins.n_vm: vq.pop(0)
                continue
            touched = ins.rd | ins.wr
            for q in lq + vq:
                if q.wr & touched:
                    raise Exception(f"{name}: missing wait: {ins.t} touches result of pending {q.t}")
            if sm & touched: raise Exception(f"{name}: missing smem wait at {ins.t}")
            if ins.k in LG: lq.append(ins)
            elif ins.k in VM:
                vq.append(ins)
                assert len(vq) <= 63, f"{name}: >63 vm ops outstanding at {ins.t}"
            elif ins.k == 'smem': sm |= ins.wr

VALUK = ('valu', 'trans', 'perm', 'rfl')
def need_states(p, c):
    n = 0
    if p.k in VALUK:
        vw = {r for r in p.wr if r[0] in 'va' and r != 'vcc'}
        sw = {r for r in p.wr if r[0] == 's' and r != 'scc' or r == 'vcc'}
        if c.k == 'mfma' and vw & c.rd: n = max(n, 2)
        if c.k == 'perm' and vw & c.rd: n = max(n, 2)
        if c.k == 'rfl' and vw & c.rd: n = max(n, 1)
        if 'dpp' in c.t or 'row_' in c.t:
            if vw & c.rd: n = max(n, 2)
        if p.k == 'trans' and c.k in ('valu', 'perm', 'rfl') and vw & c.rd: n = max(n, 1)
        if sw & c.rd:
            if c.k in VALUK: n = max(n, 2)
            if c.k in VM: n = max(n, 5)
            if c.k == 'rfl': n = max(n, 4)
            if c.k in ('salu', 'br'): n = max(n, 1)
        if 'exec' in p.wr: n = max(n, 5)
        if p.t.startswith('v_dot') and vw & (c.rd | c.wr):
            ops = c.t.replace(',', ' ').split()
            same = ops[0] == p.t.split()[0] and not (vw & set(ops[2:4]))
            if not same: n = max(n, 3)
    if p.k == 'mfma':
        if c.k == 'mfma':
            if p.wr & c.AB: n = max(n, 8)
            cc = set(c.C)
            if p.wr & cc and p.wr != cc: n = max(n, 6)
        else:
            if p.wr & (c.rd | c.wr): n = max(n, 8)
            if c.k in VALUK and set(p.C) & c.wr: n = max(n, 3)
    if p.k == 'salu' and 'm0' in p.wr and c.k == 'dma': n = max(n, 1)
    if p.k == 'vst' and p.AB & c.wr: n = max(n, 2)
    return n

def states_of(i):
    if i.k == 'lab': return 0
    if i.k == 'nop': return int(i.t.split()[1]) + 1
    return 1

def fix_hazards(paths, name="", verbose=True):
    total = 0
    changed = True
    while changed:
        changed = False
        for path in paths:
            hist = []
            for seg in path:
                j = 0
                while j < len(seg):
                    c = seg[j]
                    need = 0; d = 0
                    for p in reversed(hist[-14:]):
                        if d >= 9: break
                        r = need_states(p, c)
                        if r > d: need = max(need, r - d)
                        d += states_of(p)
                    if need > 0:
                        np_ = nop(need - 1)
                        seg.insert(j, np_); hist.append(np_); j += 1
                        total += need; changed = True
                        if verbose: print(f"  hazard nop {need} before {c.t}")
                    hist.append(c); j += 1
    return total

def verify_scc(paths, name=""):
    for path in paths:
        last = None
        for ins in flat(path):
            if 'scc' in ins.rd:
                ok = last is not None and (last.t.startswith('s_cmp') or ins.t.startswith('s_addc') or ins.t.startswith('s_subb'))
                assert ok, f"{name}: scc consumer {ins.t} sees {last}"
            if 'scc' in ins.wr: last = ins

def finish(paths, name="", verbose=False):
    verify_scc(paths, name)
    t = fix_hazards(paths, name, verbose)
    resolve_waits(paths)
    verify_waits(paths, name)
    if t: print(f"  {name}: inserted {t} hazard wait states")
    for p in paths:
        c, n = sim(flat(p)); print(f"  {name}: path est {c} cycles, {n} mfma ({16*n})")

def text(seq):
    return "".join(i.t + "\n" for i in seq)

def verify_lds(path, name=""):
    content = {}
    reads = {}
    lq = []; vq = []
    def items(i):
        if not i.lds: return []
        if isinstance(i.lds[1], list): return list(zip(i.lds[1], i.lds[2]))
        return [(i.lds[1], i.lds[2])]
    def retire(q, rest):
        for slot, cid in items(q):
            if any(z.lds and z.lds[0] == q.lds[0] and slot in [x[0] for x in items(z)] for z in rest): continue
            if q.lds[0] == 'r': reads[slot] = 'released' if len(q.lds) > 3 else 'done'
            else: content[slot][1] = 'landed'
    for ins in flat(path):
        if ins.k == 'wait':
            if ins.n_lgkm is not None:
                while len(lq) > ins.n_lgkm: q = lq.pop(0); retire(q, lq)
            if ins.n_vm is not None:
                while len(vq) > ins.n_vm: q = vq.pop(0); retire(q, vq)
            continue
        if ins.k == 'bar':
            for s in content:
                if content[s][1] == 'landed': content[s][1] = 'ready'
            for s in reads:
                if reads[s] == 'done': reads[s] = 'released'
            continue
        for slot, cid in items(ins):
            if ins.lds[0] == 'r':
                ok = slot in content and content[slot][0] == cid and (content[slot][1] == 'ready' or (len(ins.lds) > 3 and content[slot][1] == 'landed'))
                assert ok, f"{name}: read of slot {slot} wants {cid}, has {content.get(slot)} at {ins.t}"
                reads[slot] = 'issued'
            else:
                assert reads.get(slot, 'released') == 'released', f"{name}: write to slot {slot} ({cid}) while reads {reads[slot]}"
                content[slot] = [cid, 'inflight']
        if ins.k in LG: lq.append(ins)
        elif ins.k in VM: vq.append(ins)

def srd(dst, ptr, nbytes):
    return [salu('s_mov_b32', dst[0], ptr[0]), salu('s_mov_b32', dst[1], ptr[1]),
            salu('s_mov_b32', dst[2], nbytes), salu('s_mov_b32', dst[3], 0x20000)]

KD = """.p2align 6
.amdhsa_kernel {name}
  .amdhsa_next_free_vgpr {nvgpr}
  .amdhsa_next_free_sgpr 96
  .amdhsa_accum_offset {accum}
  .amdhsa_group_segment_fixed_size 0
  .amdhsa_kernarg_size 104
  .amdhsa_user_sgpr_count 2
  .amdhsa_user_sgpr_kernarg_segment_ptr 1
  .amdhsa_system_sgpr_workgroup_id_x 1
.end_amdhsa_kernel
"""
def khead(name):
    return f".globl {name}\n.p2align 8\n.type {name},@function\n{name}:\n"
```

```python
from fw import *
import struct, math
def f2u(x): return struct.unpack('<I', struct.pack('<f', x))[0]

WS_Q, WS_K, WS_V, WS_CTX, WS_H, WS_G, WS_P = 0, 16 << 20, 32 << 20, 48 << 20, 64 << 20, 96 << 20, 100 << 20
GSTR = 128 * 1024
import os
STFL = os.environ.get("STFL", " sc0 sc1")
NOSTORE = os.environ.get("NOSTORE", "0") == "1"

class SubRound:
    def __init__(s, ks, slots, cids, parts, first, swap=False, bar=None, extra=()):
        s.ks = ks; s.slots = slots; s.cids = cids; s.parts = parts; s.first = first; s.swap = swap
        s.bar = bar
        s.extra = list(extra)
        s.start = s.end = None; s.bargap = None
        s.lastm = {}
        s.firstm = {}

RDL = int(os.environ.get("RDL", "5"))
def build_backbone(subs, act, TB, trfn):
    bb = []; forced = {}; rs = []; xr = []
    for r, s in enumerate(subs):
        s.start = len(bb)
        fr = s.fr
        nk = len(s.ks)
        for p, (cb, acc) in enumerate(s.parts):
            for tb in range(TB):
                s.firstm[(p, tb)] = len(bb)
                for i, ks in enumerate(s.ks):
                    C = 0 if (s.first and i == 0) else None
                    if s.swap: bb.append(mfma(acc[tb], act(ks, tb), fr[p * nk + i], C))
                    else: bb.append(mfma(acc[tb], fr[p * nk + i], act(ks, tb), C))
                s.lastm[(p, tb)] = len(bb) - 1
        s.end = len(bb)
    lastbar = 0
    for r, s in enumerate(subs):
        fr = s.fr
        nk = len(s.ks)
        reads = []
        hb = r + 1 < len(subs) and subs[r + 1].bar is not None
        for p, (cb, acc) in enumerate(s.parts):
            for i in range(nk):
                for h in range(2):
                    x = trfn(fr[p * nk + i][2 * h:2 * h + 2], cb, s.slots[i], h)
                    x.lds = ('r', s.slots[i], s.cids[i])
                    reads.append((x, p))
        if r == 0:
            ex = list(s.extra)
            forced.setdefault(0, []).extend([wait(tags=s.xtags)] + ex + [wait(tags=s.bar), bar()] + [x for x, p in reads])
            s.bargap = 0
        else:
            p = subs[r - 1]
            mine = set(q for f_ in fr[:nk * len(s.parts)] for q in f_.regs())
            e = 1
            for j in range(r - 1, -1, -1):
                t = subs[j]
                if mine & set(q for f_ in t.fr[:len(t.ks) * len(t.parts)] for q in f_.regs()):
                    e = t.end + 1; break
            if s.bar is not None:
                forced.setdefault(p.start + 1, []).extend([wait(tags=s.bar), bar()])
                s.bargap = lastbar = p.start + 1
            e = max(e, lastbar + 1)
            for x, part in reads:
                rs.append((x, e, max(e, s.firstm[(0 if hb else part, 0)] - RDL)))
            if s.extra:
                pp = subs[r - 2]
                xr.append((wait(tags=s.xtags), pp.start + 2, pp.start + 4))
                for x in s.extra: xr.append((x, pp.start + 2, s.start - RDL))
        for part in range(len(s.parts)):
            need = [fr[part * nk + i] for i in range(nk)]
            if hb:
                if part: continue
                need = fr[:nk * len(s.parts)]
            if part == 0: need += [act(ks, tb) for ks in s.ks for tb in range(TB)]
            if r == 0 and part == 0: forced[0].append(wait(regs=need))
            else: forced.setdefault(s.firstm[(part, 0)], []).insert(0, wait(regs=need))
    return bb, forced, rs, xr

import os
STAMPS = os.environ.get("STAMPS", "0") == "1"
def stamp_begin():
    if not STAMPS: return []
    return [raw("s_memrealtime s[80:81]", 'smem', wr=['s80', 's81']), raw("s_memtime s[82:83]", 'smem', wr=['s82', 's83'])]
def stamp_end(li, sWS, sWave, wpb=4):
    if not STAMPS: return [raw('s_endpgm', 'br')]
    return [wait(vm=0), raw("s_memtime s[84:85]", 'smem', wr=['s84', 's85']), raw("s_memrealtime s[86:87]", 'smem', wr=['s86', 's87']), wait(lgkm=0),
            salu('s_sub_u32', S(84), S(84), S(82)),
            nop(7), valu('v_mov_b32', V(0), S(80)), valu('v_mov_b32', V(1), S(86)), valu('v_mov_b32', V(2), S(84)), valu('v_mov_b32', V(3), S(88)),
            salu('s_mul_i32', S(85), S(2), wpb), salu('s_add_u32', S(85), S(85), sWave), salu('s_lshl_b32', S(85), S(85), 4),
            salu('s_add_u32', S(85), S(85), (200 << 20) + li * 65536), valu('v_mov_b32', V(4), 0),
            bstore(V(0, 4), V(4), sWS, S(85)), raw('s_endpgm', 'br')]

PROF = os.environ.get("PROF", "0") == "1"
def prof_points(forced, subs, picks, vreg, first_idx=1):
    if not PROF: return
    idx = first_idx
    for r in picks:
        if r + 1 >= len(subs): continue
        forced.setdefault(subs[r].start, []).append(raw("s_memtime s[90:91]", 'smem', wr=['s90', 's91']))
        forced.setdefault(subs[r + 1].start, []).extend([wait(lgkm=0), raw(f"v_writelane_b32 {vreg}, s90, {idx}", 'valu', rd=['s90'], wr=[str(vreg)])])
        idx += 1
def prof_now(vreg, idx):
    if not PROF: return []
    return [raw("s_memtime s[90:91]", 'smem', wr=['s90', 's91']), wait(lgkm=0), raw(f"v_writelane_b32 {vreg}, s90, {idx}", 'valu', rd=['s90'], wr=[str(vreg)])]
def prof_end(li, vreg, vtmp, sWS, sWave, wpb=4):
    if not PROF: return []
    return prof_now(vreg, 62) + [wait(vm=0)] + prof_now(vreg, 63) + [raw(f"v_writelane_b32 {vreg}, s82, 0", 'valu', rd=['s82'], wr=[str(vreg)]),
            salu('s_mul_i32', S(85), S(2), wpb), salu('s_add_u32', S(85), S(85), sWave), salu('s_lshl_b32', S(85), S(85), 8),
            salu('s_add_u32', S(85), S(85), (208 << 20) + li * (1 << 20)),
            raw(f"v_mbcnt_lo_u32_b32 {vtmp}, -1, 0", 'valu', wr=[str(vtmp)]), raw(f"v_mbcnt_hi_u32_b32 {vtmp}, -1, {vtmp}", 'valu', rd=[str(vtmp)], wr=[str(vtmp)]),
            valu('v_lshlrev_b32', vtmp, 2, vtmp), bstore(vreg, vtmp, sWS, S(85)), wait(vm=0)]

def prof_dyn(vreg, vtmp, vLane, sIdx, sreg=90, add=0):
    if not PROF: return []
    return [salu('s_add_u32', S(94), sIdx, add), valu('v_mov_b32', vtmp, S(sreg)), valu('v_cmp_eq_u32', 'vcc', S(94), vLane), valu('v_cndmask_b32', vreg, vreg, vtmp, 'vcc')]
def prof_t(sreg=90):
    if not PROF: return []
    return [raw(f"s_memtime s[{sreg}:{sreg+1}]", 'smem', wr=[f's{sreg}', f's{sreg+1}'])]

def prof_pair(items, vA, vB, vI, vT, vLane):
    if not PROF: return items
    return prof_t(90) + items + prof_t(92) + [wait(lgkm=0), valu('v_cmp_eq_u32', 'vcc', vI, vLane),
            valu('v_mov_b32', vT, S(90)), valu('v_cndmask_b32', vA, vA, vT, 'vcc'), valu('v_mov_b32', vT, S(92)), valu('v_cndmask_b32', vB, vB, vT, 'vcc'),
            valu('v_add_u32', vI, 1, vI)]
```

```python
from gemm import *

sACT, sWA, sW1, sWS = S(4, 4), S(8, 4), S(12, 4), S(16, 4)
sWave, sCS, sTT = S(24), S(25), S(26)
sAO = [S(27 + i) for i in range(4)]
sM, sD, sT = S(31), S(32), S(33)
sColA, sColH, sStA, sStH = S(34), S(35), S(36), S(37)
sQC, sNL = S(38), S(39)
sSt = S(40)
sTc = S(43)
sSz = [S(68 + i) for i in range(4)]
sP = S(44, 24)
vTR = [V(1 + i) for i in range(4)]
vDA = [V(5 + i) for i in range(4)]
vDH = [V(9 + i) for i in range(4)]
vST, vX = V(13), V(14)
vXD = [V(252), V(253)]
vXR = [V(254), V(255)]
vLane, vT0 = V(15), V(0)
ACTX = 16
ACC = 48
WB = 176
TMP = 212

def act(ks, tb):
    f = ks * 4 + tb
    return A(4 * f, 4) if f < 64 else V(ACTX + 4 * (f - 64), 4)

def setup_lanes(RING, strideA, strideH, actstride):
    o = []
    t0, t1, t2 = V(TMP), V(TMP + 1), V(TMP + 2)
    PS = 40 * 1024
    o += [valu('v_lshrrev_b32', t0, 4, vLane),
          salu('s_mov_b32', sT, PS),
          valu('v_mul_lo_u32', vTR[0], t0, sT),
          valu('v_and_b32', t1, 1, t0), valu('v_lshlrev_b32', t1, 6, t1),
          valu('v_add_u32', vTR[0], vTR[0], t1),
          valu('v_bfe_u32', t1, vLane, 2, 2),
          valu('v_lshlrev_b32', t2, 7, t1), valu('v_add_u32', vTR[0], vTR[0], t2),
          valu('v_lshrrev_b32', t1, 1, t1), valu('v_lshlrev_b32', t1, 5, t1), valu('v_add_u32', vTR[0], vTR[0], t1),
          valu('v_and_b32', t1, 3, vLane), valu('v_lshlrev_b32', t1, 3, t1), valu('v_add_u32', vTR[0], vTR[0], t1)]
    for cb in range(1, 4): o.append(valu('v_xor_b32', vTR[cb], cb * 32, vTR[0]))
    o += [valu('v_lshrrev_b32', t0, 3, vLane),
          valu('v_and_b32', t1, 2, t0),
          salu('s_and_b32', sT, sWave, 1), salu('s_lshl_b32', sT, sT, 2),
          valu('v_or_b32', t1, sT, t1),
          valu('v_and_b32', t2, 7, vLane), valu('v_xor_b32', t1, t1, t2), valu('v_lshlrev_b32', t1, 4, t1),
          salu('s_lshl_b32', sT, sWave, 3), valu('v_add_u32', t0, sT, t0)]
    for vD, st in ((vDA, strideA), (vDH, strideH)):
        if st is None: continue
        o += [salu('s_mov_b32', sT, st), valu('v_mul_lo_u32', vD[0], t0, sT), valu('v_add_u32', vD[0], vD[0], t1)]
        for i in range(1, 4): o.append(valu('v_add_u32', vD[i], i * (32 * st - 1024), vD[0]))
    o += [valu('v_lshlrev_b32', vST, 4, vLane),
          valu('v_and_b32', t0, 15, vLane), salu('s_mov_b32', sT, actstride), valu('v_mul_lo_u32', vX, t0, sT),
          valu('v_lshrrev_b32', t0, 4, vLane), valu('v_lshlrev_b32', t0, 4, t0), valu('v_add_u32', vX, vX, t0),
          salu('s_mul_i32', sM, sWave, PS)]
    o += [valu('v_lshrrev_b32', t0, 3, vLane), valu('v_mul_lo_u32', vXD[0], t0, sT),
          valu('v_lshrrev_b32', t1, 1, t0), valu('v_and_b32', t2, 7, vLane), valu('v_xor_b32', t1, t1, t2), valu('v_lshlrev_b32', t1, 4, t1),
          valu('v_xor_b32', t2, 64, t1), valu('v_add_u32', vXD[1], vXD[0], t2), valu('v_add_u32', vXD[1], 8 * actstride - 1024, vXD[1]),
          valu('v_add_u32', vXD[0], vXD[0], t1)]
    o += [valu('v_and_b32', t0, 15, vLane), valu('v_lshrrev_b32', t1, 1, t0), valu('v_lshrrev_b32', t2, 4, vLane), valu('v_xor_b32', t1, t1, t2),
          valu('v_lshlrev_b32', t1, 4, t1), valu('v_lshlrev_b32', t0, 7, t0), valu('v_add3_u32', vXR[0], t0, t1, sM), valu('v_xor_b32', vXR[1], 64, vXR[0])]
    o += [salu('s_lshl_b32', sT, sTT, 2), salu('s_add_u32', sT, sT, sWave), salu('s_mul_i32', sAO[0], sT, 64 * actstride)]
    for i in range(1, 4): o.append(salu('s_add_u32', sAO[i], sAO[0], i * 16 * actstride))
    return o

class Blk:
    def __init__(s, typ, idx, second=None):
        s.typ = typ; s.idx = idx
        if second is None: second = typ == 'H'
        s.st = 9216 if typ == 'H' else 8192
        s.srd, s.col, s.sto = (sW1, sColH, sStH) if second else (sWA, sColA, sStA)
DSTEP = int(os.environ.get("DSTEP", "4"))
FSTEP = int(os.environ.get("FSTEP", "4"))

def alloc_x(NU, PRE, npairs):
    import itertools
    W = lambda u: {u, NU + u} if 0 <= u < NU else set()
    sol = []
    def rec(u):
        if u == NU: return True
        forb = set()
        for v in range(max(0, u - PRE), u + PRE): forb |= W(v)
        for v in range(max(0, u - PRE + 1), u): forb |= set(sol[v])
        free = [p for p in range(npairs) if p not in forb]
        free.sort(key=lambda p: -p)
        for c in itertools.combinations(free, 4):
            sol.append(c)
            if rec(u + 1): return True
            sol.pop()
        return False
    assert rec(0)
    return sol

PRE = int(os.environ.get("PRE", "2"))
TOFF = int(os.environ.get('TOFF', '0'))
def l1_path(name, blocks, NK, CH, tplan=(), verbose=1):
    NG = NK // CH
    NU = NK // 2
    wbuf1 = [[V(WB + 4 * (4 * b + i), 4) for i in range(4)] for b in range(2)]
    if CH == 3: wbuf2 = [[V(WB + 4 * (3 * b + i), 4) for i in range(3)] for b in range(3)]
    else: wbuf2 = wbuf1 + [[V(ACTX + 4 * i, 4) for i in range(4)]]
    def accset(s): return [[V(ACC + 32 * s + 16 * c + 4 * tb, 4) for tb in range(4)] for c in range(2)]
    def trfn(dst, cb, slot, h): return tr(dst, vTR[cb], slot * 1024 + h * 512)
    def dmagrp(b, k0, n):
        B = blocks[b]
        vD = vDH if B.st == 9216 else vDA
        o = [salu('s_add_u32', 'm0', sM, ((b & 1) * NK + k0) * 1024),
             salu('s_add_u32', sD, B.col, B.idx * 128 + k0 * 32 * B.st)]
        for i in range(n):
            x = dma(vD[i], B.srd, sD, i * 1024, tag=('w', b, k0 + i))
            x.lds = ('w', (b & 1) * NK + k0 + i, (b, k0 + i))
            o.append(x)
        return o
    xa = alloc_x(NU, PRE, 20)
    def xdma(u):
        o = []
        for tb in range(4):
            p = xa[u][tb]
            so, io = sAO[tb], u * 128
            if p == 0:
                o.append(salu('s_add_u32', sD, sAO[tb], u * 128)); so, io = sD, 0
            o.append(salu('s_add_u32', 'm0', sM, p * 2048 - io))
            for i in range(2):
                x = dma(vXD[i], sACT, so, io + i * 1024, tag=('x', u))
                x.lds = ('w', 2 * p + i, ('x', u, tb, i)); o.append(x)
        return o
    def xreads(u):
        o = []
        for kl in range(2):
            for tb in range(4):
                p = xa[u][tb]
                x = dsr128(act(2 * u + kl, tb), vXR[kl], p * 2048)
                x.lds = ('r', [2 * p, 2 * p + 1], [('x', u, tb, 0), ('x', u, tb, 1)], True); o.append(x)
        return o
    nb = len(blocks)
    subs = []
    lastsub = {}; firstsub = {}
    for u in range(NU):
        for b in range(2):
            for half in range(2):
                ks = [2 * u, 2 * u + 1]
                f = (b == 0 and half == 0)
                ac = accset(b * 2 + half)
                s = SubRound(ks, [b * NK + k for k in ks], [(b, k) for k in ks], [(half * 2, ac[0]), (half * 2 + 1, ac[1])], u == 0,
                             swap=blocks[b].typ == 'V', bar=[('w', bb_, k) for bb_ in range(2) for k in ks] if f else None,
                             extra=xreads(u) if f else ())
                s.xtags = [('x', u)]; s.fr = wbuf1[len(subs) % 2]
                subs.append(s); s.key = (b, half, 0, u)
                for c in range(2): lastsub[(b, half, c)] = (s, c)
    def free_at(slot):
        t = (slot % NK) // 2 + 1
        for u in range(NU):
            if slot // 2 in xa[u]: t = max(t, u)
        return t
    late = [k for k in range(NK) if free_at(k) >= NU - 1]
    firstlate = min(late) // CH
    if verbose > 1: print(xa, [free_at(k) for k in range(2 * NK)], firstlate)
    for b in range(2, nb):
        for half in range(2):
            for n in range(NG):
                for c in range(2):
                    ks = list(range(n * CH, n * CH + CH))
                    barr = None
                    if half == 0 and c == 0:
                        if b == 2:
                            if n == 0: barr = [('w', b, k) for k in range(firstlate * CH)]
                            if n == firstlate: barr = [('w', b, k) for k in range(NK)]
                        elif n == 0: barr = [('w', b, k) for k in range(NK)]
                    s = SubRound(ks, [(b & 1) * NK + k for k in ks], [(b, k) for k in ks], [(half * 2 + c, accset((b & 1) * 2 + half)[c])], n == 0,
                                 swap=blocks[b].typ == 'V', bar=barr)
                    s.fr = wbuf2[(len(subs) - 4 * NU) % 3]
                    subs.append(s); s.key = (b, half, c, n)
                    lastsub[(b, half, c)] = (s, 0)
                    if n == 0: firstsub[(b, half, c)] = (s, 0)
    bb, forced, rs, xr = build_backbone(subs, act, 4, trfn)
    sub = {s.key: s for s in subs}
    prof_points(forced, subs, [r for r, s in enumerate(subs) if (s.key[0] < 2 and s.key[:3] == (0, 0, 0)) or (s.key[0] >= 2 and s.key[2:] == (0, 0))], V(0), 2)
    N = len(bb)
    pro = []
    for u in range(PRE): pro += xdma(u) + dmagrp(0, 2 * u, 2) + dmagrp(1, 2 * u, 2)
    ms = []
    ts = []
    TOUCH = os.environ.get("TOUCH", "1") == "1"
    if nb > 2 and TOUCH:
        tv = [V(TMP + 16 + i) for i in range(16)]
        RW = 2 * NK // 2 // 1
        RW = NK
        sh = 2 if NK == 16 else 1
        t0 = tv[15]
        pro += [valu('v_lshrrev_b32', t0, sh, vLane), valu('v_min_u32', t0, RW - 1, t0),
                salu('s_lshl_b32', sT, sTT, 2), salu('s_add_u32', sT, sT, sWave), salu('s_mul_i32', sT, sT, RW), valu('v_add_u32', t0, sT, t0),
                valu('v_lshlrev_b32', tv[0], 13, t0), salu('s_movk_i32', sT, 9216), valu('v_mul_u32_u24', tv[1], sT, t0),
                valu('v_and_b32', t0, 1, vLane), valu('v_lshlrev_b32', t0, 7, t0),
                valu('v_add_u32', tv[2], tv[0], t0), valu('v_add_u32', tv[3], tv[1], t0),
                valu('v_and_b32', t0, 3, vLane), valu('v_min_u32', t0, 2, t0), valu('v_lshlrev_b32', t0, 7, t0), valu('v_add_u32', tv[4], tv[0], t0)]
        nd = [5]
        def touch(g, bs):
            B = blocks[bs[0]]
            assert all(blocks[x].typ == B.typ and blocks[x].idx == B.idx + i for i, x in enumerate(bs))
            va = tv[4] if len(bs) == 3 else tv[(2 if len(bs) == 2 else 0) + (B.st == 9216)]
            ts.append((bload(tv[nd[0]], va, B.srd, B.col, B.idx * 128), g, g + 8)); nd[0] += 1
        for when, bs in tplan:
            if when[0] == 'u': g = sub[(0, 0, 0, when[1])].start + 56
            else: g = sub[(when[1], when[2], 0, 0)].start + TOFF
            touch(g, bs)
    def spread(items, g0, step):
        g = g0
        for x in items:
            ms.append((x, g, g + 6))
            if x.k in VM: g += step
        return g
    pend = []
    if nb > 2: pend += [(2, u) for u in range(NU)]
    if nb > 3: pend += [(3, u) for u in range(NU)]
    for u in range(NU):
        g = sub[(0, 0, 0, u)].start + 1
        if u + PRE < NU:
            spread(xdma(u + PRE) + dmagrp(0, 2 * (u + PRE), 2) + dmagrp(1, 2 * (u + PRE), 2), g, FSTEP)
        else:
            cnt = 0
            for (b, m) in list(pend):
                if free_at((b & 1) * NK + 2 * m) <= u and cnt < 5:
                    g = spread(dmagrp(b, 2 * m, 2), g, FSTEP); pend.remove((b, m)); cnt += 1
    if nb > 2:
        g = sub[(2, 0, 0, 0)].bargap + 1
        for (b, m) in pend: g = spread(dmagrp(b, 2 * m, 2), g, 6)
    for b in range(3, nb - 1):
        g = sub[(b, 0, 0, 0)].bargap + 1
        k = 0
        while k < NK:
            n = min(4, NK - k)
            g = spread(dmagrp(b + 1, k, n), g, DSTEP); k += n
    NS = 4
    ess = [[] for _ in range(NS)]
    LAG = 8
    for b in range(nb):
        B = blocks[b]
        for half in range(2):
            ac = accset((b & 1) * 2 + half)
            last = [lastsub[(b, half, c)] for c in range(2)]
            nxt = [firstsub.get((b + 2, half, c)) for c in range(2)]
            H = B.typ == 'H'
            for j in range(4):
                z = j
                if B.typ == 'V': tiles = [(j >> 1, (j & 1) * 2), (j >> 1, (j & 1) * 2 + 1)]
                else: tiles = [(0, j), (1, j)]
                d = min(nxt[c][0].firstm[(0, tb)] for c, tb in tiles) - 1 if nxt[0] else N
                out = ac[tiles[0][0]][tiles[0][1]]
                for q, (c, tb) in enumerate(tiles):
                    e = min(last[c][0].lastm[(last[c][1], tb)] + 1 + LAG, N)
                    items = []
                    if q == 0: items.append(salu('s_add_u32', sSz[z], B.sto, (B.idx * 2 + half) * GSTR))
                    src = ac[c][tb]
                    if B.typ == 'K':
                        items += [valu('v_mul_f32', src[i], sQC, src[i]) for i in range(4)]
                    elif H:
                        t = V(TMP + 4 * z, 4)
                        items += [valu('v_mul_f32', t[i], sNL, src[i]) for i in range(4)]
                        items += [valu('v_exp_f32', t[i], t[i]) for i in range(4)]
                        items += [valu('v_add_f32', t[i], 1.0, t[i]) for i in range(4)]
                        items += [valu('v_rcp_f32', t[i], t[i]) for i in range(4)]
                        items += [valu('v_mul_f32', src[i], t[i], src[i]) for i in range(4)]
                    items += [valu('v_cvt_pk_bf16_f32', out[2 * q], src[0], src[1]), valu('v_cvt_pk_bf16_f32', out[2 * q + 1], src[2], src[3])]
                    if q == 1 and not NOSTORE: items.append(bstore(out, vST, sWS, sSz[z], j * 1024, fl=STFL))
                    for x in items: ess[z].append((x, e, d))
    if verbose: print(name)
    body = schedule(bb, forced, [rs, xr, ms, ts] + ess, verbose=verbose)
    return pro + prof_now(V(0), 1) + body

def gate_code():
    o = []
    WL, WH, XR = 16, 52, 88
    t = V(236, 12); vG, vO = V(248), V(249); ones = V(250); acc = [V(232 + i) for i in range(4)]
    o += [valu('v_and_b32', vG, 7, vLane), valu('v_lshlrev_b32', vG, 4, vG)]
    for c in range(9): o.append(bload(V(WH + 4 * c, 4), vG, sWA, 0, c * 128))
    o += [valu('v_lshrrev_b32', vO, 3, vLane), salu('s_movk_i32', sT, 1152), valu('v_mad_u32_u24', vG, vO, sT, vG), valu('v_lshlrev_b32', vO, 2, vO),
          salu('s_lshl_b32', sT, sTT, 2), salu('s_add_u32', sT, sT, sWave), salu('s_lshl_b32', sSt, sT, 8), salu('s_add_u32', sSt, sSt, WS_G),
          salu('s_mul_i32', sD, sT, 64 * 1152), valu('v_mov_b32', ones, 0x3f803f80)]
    def loads(grp):
        r = []
        for c in range(9): r.append(bload(V(XR + 36 * (grp % 4) + 4 * c, 4), vG, sACT, sD, c * 128))
        return r + [salu('s_add_u32', sD, sD, 8 * 1152)]
    for grp in range(4): o += loads(grp)
    o.append(wait(regs=[V(WH, 36)]))
    for i in range(36):
        o += [valu('v_and_b32', V(WL + i), 0xffff, V(WH + i)), valu('v_and_b32', V(WH + i), 0xffff0000, V(WH + i))]
    for grp in range(8):
        X = XR + 36 * (grp % 4)
        a = acc[grp % 2]; a2 = acc[2]
        o.append(wait(regs=[V(X, 36)]))
        o.append(valu('v_mov_b32', a, 0))
        for i0 in range(0, 36, 4):
            for i in range(4): o += [valu('v_dot2_f32_bf16', t[2 * i], V(X + i0 + i), V(WL + i0 + i), 0), valu('v_dot2_f32_bf16', t[2 * i + 1], V(X + i0 + i), V(WH + i0 + i), 0)]
            for i in range(4): o.append(valu('v_cvt_pk_bf16_f32', t[8 + i], t[2 * i], t[2 * i + 1]))
            for i in range(4): o.append(valu('v_dot2_f32_bf16', a, t[8 + i], ones, a))
        if grp < 4: o += loads(grp + 4)
        for m in (" quad_perm:[1,0,3,2]", " quad_perm:[2,3,0,1]", " row_half_mirror"):
            o.append(valu('v_add_f32_dpp', a, a, a, mods=m + " row_mask:0xf bank_mask:0xf"))
        o += [valu('v_cvt_pk_bf16_f32', a, a, a), valu('v_and_b32', a, 0xffff0000, a),
              valu('v_mul_f32', a, sNL, a), valu('v_exp_f32', a, a), valu('v_add_f32', a, 1.0, a), valu('v_rcp_f32', a, a),
              valu('v_cvt_pk_bf16_f32', a, a, a), valu('v_and_b32', a, 0xffff0000, a),
              valu('v_sub_f32', a2, 1.0, a),
              valu('v_cvt_pk_bf16_f32', a2, a2, a2), valu('v_and_b32', a2, 0xffff0000, a2),
              bstore(a, vO, sWS, sSt, grp * 32, fl=STFL), salu('s_add_u32', sT, sSt, 8192), bstore(a2, vO, sWS, sT, grp * 32, fl=STFL)]
    return o

def gen_l1():
    P = lambda i: sP[2 * i:2 * i + 2]
    head = [salu('s_cmp_ge_u32', S(2), 256), br('s_cbranch_scc1', 'L1_exit')] + stamp_begin() + [
            sload(sP[0:8], S(0, 2), 0), sload(sP[8:16], S(0, 2), 32), sload(sP[16:20], S(0, 2), 64), sload(sP[20:22], S(0, 2), 96),
            valu('v_lshrrev_b32', V(TMP), 6, V(0)), valu('v_and_b32', vLane, 63, V(0)),
            valu('v_readfirstlane_b32', sWave, V(TMP)),
            salu('s_and_b32', sCS, S(2), 7), salu('s_lshl_b32', sCS, sCS, 2), salu('s_bfe_u32', sT, S(2), 3 | (2 << 16)),
            salu('s_add_u32', sCS, sCS, sT), salu('s_lshr_b32', sTT, S(2), 5),
            salu('s_mov_b32', sQC, f2u(math.log2(math.e) / math.sqrt(128))), salu('s_mov_b32', sNL, f2u(-math.log2(math.e))),
            wait(lgkm=0)]
    head += srd(sWS, P(10), 256 << 20) + srd(sW1, P(7), 576 * 4608 * 2)
    head += [salu('s_lshl_b32', sT, sTT, 2), salu('s_add_u32', sT, sT, sWave), salu('s_lshl_b32', sSt, sT, 12),
             salu('s_cmp_lt_u32', sCS, 17), br('s_cbranch_scc1', 'L1_x'),
             salu('s_cmp_lt_u32', sCS, 24), br('s_cbranch_scc1', 'L1_k'),
             salu('s_cmp_lt_u32', sCS, 31), br('s_cbranch_scc1', 'L1_v')]
    def cpre(lbl, wptr, ws, b0reg_code):
        o = [lab(lbl)] if lbl else []
        o += srd(sACT, P(1), 2048 * 512 * 2) + srd(sWA, wptr, 512 * 4096 * 2)
        o += b0reg_code
        o += [salu('s_lshl_b32', sColA, sT, 7), salu('s_mul_i32', sStA, sT, 2 * GSTR), salu('s_add_u32', sStA, sStA, ws),
              salu('s_lshl_b32', sT, sTT, 2), salu('s_add_u32', sT, sT, sWave), salu('s_lshl_b32', sT, sT, 12),
              salu('s_add_u32', sStA, sStA, sT)]
        o += setup_lanes(32, 8192, None, 1024)
        return o
    end = lambda: prof_end(0, V(0), V(1), sWS, sWave) + stamp_end(0, sWS, sWave)
    m1 = cpre(None, P(3), WS_K, [salu('s_mov_b32', sT, 63)]) + srd(sW1, P(4), 512 * 4096 * 2) + \
        [salu('s_mov_b32', sColH, sColA), salu('s_add_u32', sStH, sStA, WS_V - WS_K)] + \
        l1_path('misc', [Blk('K', 0), Blk('V', 0, True)], 16, 4)
    m3 = [wait(vm=0)] + srd(sACT, P(0), 2048 * 576 * 2) + srd(sWA, P(9), 576 * 2) + gate_code()
    m4 = end() + [lab('L1_exit'), raw('s_endpgm', 'br')]
    KVP = [(('u', 2), [2, 3]), (('b', 2, 1), [4, 5]), (('b', 4, 1), [6, 7, 8])]
    kp = cpre('L1_k', P(3), WS_K, [salu('s_sub_u32', sT, sCS, 17), salu('s_mul_i32', sT, sT, 9)]) + \
        l1_path('K', [Blk('K', i) for i in range(9)], 16, 4, KVP) + end()
    vp = cpre('L1_v', P(4), WS_V, [salu('s_sub_u32', sT, sCS, 24), salu('s_mul_i32', sT, sT, 9)]) + \
        l1_path('V', [Blk('V', i) for i in range(9)], 16, 4, KVP) + end()
    xp = [lab('L1_x')] + srd(sACT, P(0), 2048 * 576 * 2) + srd(sWA, P(2), 576 * 4096 * 2) + setup_lanes(36, 8192, 9216, 1152)
    sA, sB = S(41), S(42)
    xp += [salu('s_lshl_b32', sA, sCS, 2), salu('s_mul_i32', sT, sCS, 3), salu('s_add_u32', sT, sT, 13), salu('s_min_u32', sA, sA, sT),
           salu('s_lshl_b32', sB, sCS, 2), salu('s_mul_i32', sT, sCS, 5), salu('s_sub_u32', sT, sT, 13), salu('s_max_i32', sB, sB, sT),
           salu('s_lshl_b32', sColA, sA, 7), salu('s_lshl_b32', sColH, sB, 7),
           salu('s_mul_i32', sStA, sA, 2 * GSTR), salu('s_add_u32', sStA, sStA, sSt), salu('s_add_u32', sStA, sStA, WS_Q),
           salu('s_mul_i32', sStH, sB, 2 * GSTR), salu('s_add_u32', sStH, sStH, sSt), salu('s_add_u32', sStH, sStH, WS_H),
           salu('s_cmp_lt_u32', sCS, 13), br('s_cbranch_scc0', 'L1_xb')]
    Q = lambda i: Blk('Q', i); Hh = lambda i: Blk('H', i)
    xa = l1_path('xA', [Q(0), Hh(0), Hh(1), Q(1), Hh(2), Hh(3), Q(2), Q(3)], 18, 3, [(('u', 2), [2]), (('u', 4), [3]), (('b', 2, 1), [4, 5]), (('b', 4, 1), [6, 7])]) + end()
    xb = [lab('L1_xb')] + l1_path('xB', [Q(0), Hh(0), Hh(1), Hh(2), Q(1), Hh(3), Hh(4), Q(2)], 18, 3, [(('u', 2), [2, 3]), (('b', 2, 1), [4]), (('b', 3, 1), [5, 6]), (('b', 5, 1), [7])]) + end()
    paths = [[head, m1, m3, m4], [head, kp], [head, vp], [head, xp, xa], [head, xp, xb]]
    finish(paths, 'L1')
    for p in paths: verify_lds(p, 'L1')
    return text(head + m1 + m3 + m4 + kp + vp + xp + xa + xb)

if __name__ == '__main__':
    t = gen_l1()
    print(len(t), t.count('\n'))
```

```python
from gemm import *

sWS = S(16, 4)
sWave, sH, sPp, sT, sTn, sR = S(24), S(25), S(26), S(27), S(28), S(29)
sKb, sVb, sKn, sKrun, sVrun = S(30), S(31), [S(32), S(33)], S(34), S(35)
sD, sTmp, sM, sRH, sKH = S(36), S(37), S(38), S(39), S(40)
sQo = [S(41 + i) for i in range(4)]
sCo = [S(45), S(46)]
sBad, sSafe, sPass = S(47), S(48), S(49)
sGq = [S(50 + i) for i in range(4)]
sVn = S(54)
sD2 = S(55)
sMsk = S(56, 2)
sP = S(60, 6)
sPF = [S(8, 4), S(4, 4)]; sPO = [S(66), S(67)]
OOB = 0x10000000
vL16, vL16b = V(1), V(2)
vK = [V(3), V(4)]; vV = [V(5), V(6)]
vG = [V(7), V(8)]
vMW, vMR, vLW, vLR = V(9), V(10), V(11), V(12)
vPFa, vPFd = V(248), [V(249), V(254)]
vChk = V(13); vLane = V(14); vT0 = V(15); vT1 = V(0)
SB, PB, OK_, LK, CI, CD = 16, 80, 144, 208, 216, 232
PP = lambda items: prof_pair(items, V(250), V(251), V(252), V(253), vLane)
def St(kb, q): return V(SB + 4 * (kb * 4 + q), 4)
def Pf(e, c, q): return V(PB + 32 * e + 4 * (c * 4 + q), 4)
def O(db, q): return V(OK_ + 4 * (db * 2 + q), 4) if q < 2 else A(64 + 4 * (db * 2 + q - 2), 4)
def Lq(q): return V(LK + 4 * q, 4) if q < 2 else A(128 + 4 * (q - 2), 4)
def Qf(ks, q): return A(4 * (q * 4 + ks), 4)
ONES = A(136, 4)
def FB(i, j): return A(140 + 16 * i + 4 * j, 4)
def Ci(q): return V(CI + 4 * q, 4)
def Cd(q, b): return V(CD + 8 * (q // 3) + 4 * b, 4)
KB0, VB0, MRG = 0, 65536, 98304

PAIRS = {0: [[0, 1, 2, 3], [3]], 1: [[0, 1, 3], [0, 1]]}
BND = {0: {(0, 0), (1, 3)}, 1: {(0, 3), (1, 0)}}
FULL = [[0, 1, 2, 3], [0, 1, 2, 3]]
TX, TA = 11, 15
LAG = 4
VMG = 4

class Seg:
    def __init__(s): s.bb = []; s.forced = {}; s.rs = []; s.ms = []; s.sm = [[], []]; s.xs = []; s.tile_end = {}; s.tile_start = {}; s.pfirst = {}; s.tail = []
    def n(s): return len(s.bb)
    def force(s, g, items): s.forced.setdefault(g, []).extend(items)
    def qk(s, kb, qs, kh=None):
        c, b = kb >> 1, kb & 1
        for q in qs:
            C = Cd(q, b) if (kh is not None and (c, q) in BND[kh]) else Ci(q)
            s.tile_start[(kb, q)] = s.n()
            for ks in range(4):
                s.bb.append(mfma(St(kb, q), FB(kb, ks), Qf(ks, q), C if ks == 0 else None))
            s.tile_end[(kb, q)] = s.n()
    def lsum(s, e, pairs, first=False):
        for q in range(4):
            cs = [c for c in range(2) if q in pairs[c]]
            for i, c in enumerate(cs):
                s.pfirst.setdefault((e, c, q), s.n())
                s.bb.append(mfma(Lq(q), ONES, Pf(e, c, q), 0 if (first and i == 0) else None))
    def pv(s, i, e, pairs, first=False):
        for d in range(2):
            for q in range(4):
                cs = [c for c in range(2) if q in pairs[c]]
                for k, c in enumerate(cs):
                    s.pfirst.setdefault((e, c, q), s.n())
                    s.bb.append(mfma(O(2 * i + d, q), FB(i, 2 * d + c), Pf(e, c, q), 0 if (first and k == 0) else None))
    def kreads(s, kb, buf, cid, e, d):
        for ks in range(4):
            x = dsr128(FB(kb, ks), vK[kb >> 1], buf * 32768 + ks * 8192 + (kb & 1) * 1024); x.lds = ('r', ('K', buf), cid)
            s.rs.append((x, e, d))
    def vreads(s, i, buf, cid, e, d):
        for dd in range(2):
            for c in range(2):
                x = dsr128(FB(i, 2 * dd + c), vV[c], buf * 32768 + i * 8192 + dd * 2048); x.lds = ('r', ('V', buf), cid)
                s.rs.append((x, e, d))
    def soft(s, tiles, e, efn, dfn):
        for j, (kb, q) in enumerate(tiles):
            T = St(kb, q); Pq = Pf(e, kb >> 1, q); b = kb & 1
            it = [valu('v_exp_f32', T[i], T[i]) for i in range(4)]
            it += [valu('v_cvt_pk_bf16_f32', Pq[2 * b], T[0], T[1]), valu('v_cvt_pk_bf16_f32', Pq[2 * b + 1], T[2], T[3])]
            z = (kb * 4 + q) & 1
            for x in it: s.sm[z].append((x, efn(kb, q), dfn(kb, q)))
    def mem(s, items, g0, step):
        g = g0
        for x in items:
            s.ms.append((x, g, g + 6))
            if x.k in VM: g += step
        return g
    def emit(s, name):
        n = s.n()
        clip = lambda st: [(x, min(e, n), min(d, n)) for x, e, d in st]
        print(name, end="")
        return schedule(s.bb, s.forced, [clip(s.rs), clip(s.ms), clip(s.sm[0]), clip(s.sm[1]), clip(s.xs)], verbose=1) + s.tail

def dmahalf(kind, buf, half, soff, cid):
    base = (KB0 if kind == 'K' else VB0) + buf * 32768 + half * 4096
    o = [salu('s_add_u32', 'm0', sM, base)]
    for i in range(4):
        x = dma(vL16b if half else vL16, sWS, soff, i * 1024, tag=(kind, buf)); x.lds = ('w', (kind, buf), cid); o.append(x)
    return o
def fbw(i, j, tags=()): return wait(regs=[FB(a, b) for a in (i, j) for b in range(4)], tags=tags)
ALLT = [(kb, q) for kb in range(4) for q in range(4)]

CID = 0

def ksel(par, thresh):
    return [salu('s_cmp_ge_u32', sR, thresh), salu('s_cselect_b32', sD, sKrun, sKn[par]), salu('s_add_u32', sKrun, sKrun, 8192)]

def seg_Ha(e):
    s = Seg()
    for kb in range(4): s.qk(kb, range(4))
    s.lsum(e, FULL); s.pv(0, e, FULL); s.pv(1, e, FULL)
    n = s.n()
    s.force(0, [fbw(0, 1)])
    s.kreads(2, e ^ 1, CID, 1, 14); s.kreads(3, e ^ 1, CID, 1, 20)
    s.force(32, PP([fbw(2, 3, [('V', e)]), bar()]))
    s.vreads(0, e, CID, 33, 50); s.vreads(1, e, CID, 33, 58)
    s.force(72, [fbw(0, 1)])
    s.vreads(2, e, CID, 65, 86); s.vreads(3, e, CID, 65, 94)
    s.soft(ALLT[TA:], e, lambda kb, q: 0, lambda kb, q: s.tile_start[(kb, q)])
    s.soft(ALLT[:TX], e ^ 1, lambda kb, q: s.tile_end[(kb, q)] + LAG, lambda kb, q: n - 1)
    g = s.mem(dmahalf('V', e ^ 1, 1, sVrun, CID) + [salu('s_add_u32', sVrun, sVrun, 8192)], 2, 8)
    s.mem(ksel(e ^ 1, 2) + dmahalf('K', e ^ 1, 0, sD, CID) + dmahalf('K', e ^ 1, 1, sD, CID), 34, 8)
    s.xs += [(bload(vPFd[e], vPFa, sPF[e], sPO[e]), 6, 30), (raw(f"s_addk_i32 {sPO[e]}, 768", wr=['scc', str(sPO[e])], rd=[str(sPO[e])]), 6, 31)]
    s.tail = [salu('s_cmp_eq_u32', sR, 0), br('s_cbranch_scc1', f'L2_T{e}')]
    return s.emit(f"Ha{e}")

def seg_Hb(e, kh=None, jump=None):
    s = Seg()
    pr = FULL if kh is None else PAIRS[kh]
    s.pv(2, e, pr, kh is not None); s.pv(3, e, pr, kh is not None)
    n = s.n()
    s.force(0, PP([fbw(2, 3, [('K', e)]), bar()]))
    s.kreads(0, e, CID, 1, n - 10); s.kreads(1, e, CID, 1, n - 4)
    s.soft(ALLT[TX:TA], e ^ 1, lambda kb, q: 0, lambda kb, q: n - 1)
    s.mem([salu('s_sub_u32', sR, sR, 1)] + dmahalf('V', e, 0, sVrun, CID), 2, 8 if kh is None else 5)
    if jump: s.tail = [br('s_branch', jump)]
    return s.emit(f"Hb{e}{kh}")

def seg_Tb(e, kh=None, jump=None):
    s = Seg()
    pr = FULL if kh is None else PAIRS[kh]
    s.pv(2, e, pr, kh is not None); s.pv(3, e, pr, kh is not None)
    n = s.n()
    s.force(0, PP([fbw(2, 3, [('V', e ^ 1)]), bar()]))
    s.vreads(0, e ^ 1, CID, 1, n - 6); s.vreads(1, e ^ 1, CID, 1, n - 2)
    s.soft(ALLT[TX:], e ^ 1, lambda kb, q: 0, lambda kb, q: n)
    if jump: s.tail = [br('s_branch', jump)]
    return s.emit(f"Tb{e}{kh}")

def qloads():
    o = []
    for q in range(4):
        for ks in range(4):
            o += [salu('s_add_u32', sD2, sQo[q], ks * GSTR), bload(Qf(ks, q), vL16, sWS, sD2, 0)]
    return o

def seg_Tc(e, jump=None):
    s = Seg()
    s.lsum(e, FULL)
    for i in range(4): s.pv(i, e, FULL)
    n = s.n()
    s.force(8, [fbw(0, 1)])
    s.vreads(2, e, CID, 1, 20); s.vreads(3, e, CID, 1, 28)
    s.force(40, PP([fbw(2, 3), bar()]))
    s.mem(qloads(), 2, 4)
    if jump: s.tail = [br('s_branch', jump)]
    return s.emit(f"Tc{e}")

def zero_init(kh):
    if kh == 0: return []
    o = []
    for r in [O(db, 2) for db in range(8)] + [Lq(2)]:
        o += [valu('v_accvgpr_write_b32', r[i], 0) for i in range(4)]
    return o

def seg_D1(kh):
    s = Seg()
    pr = PAIRS[kh]
    dt = [(kb, q) for kb in range(4) for q in pr[kb >> 1]]
    st = []
    for kb in range(4): st.append(s.n()); s.qk(kb, pr[kb >> 1], kh)
    dend = dict(s.tile_end)
    a0 = s.n()
    for kb in range(4): s.qk(kb, range(4))
    b0 = s.n()
    s.lsum(0, pr, True); p0 = s.n(); s.pv(0, 0, pr, True); s.pv(1, 0, pr, True)
    n = s.n()
    for kb in range(4): s.kreads(kb, 0, CID, 0, 0)
    s.rs.append((wait(regs=[FB(0, j) for j in range(4)] + [Qf(ks, q) for ks in range(4) for q in range(4)]), 0, 0))
    s.force(st[1], [wait(regs=[FB(1, j) for j in range(4)])])
    s.force(st[2], PP([fbw(2, 3, [('K', 1)]), bar()]))
    s.kreads(0, 1, CID, st[2], st[2] + 2); s.kreads(1, 1, CID, st[2], st[2] + 5)
    s.force(a0, [wait(regs=[FB(0, j) for j in range(4)])])
    s.force(a0 + 16, [wait(regs=[FB(1, j) for j in range(4)])])
    s.kreads(2, 1, CID, a0 + 1, a0 + 14); s.kreads(3, 1, CID, a0 + 1, a0 + 20)
    s.force(a0 + 32, PP([fbw(2, 3, [('V', 0)]), bar()]))
    s.vreads(0, 0, CID, a0 + 33, a0 + 50); s.vreads(1, 0, CID, a0 + 33, a0 + 58)
    s.force(p0, [fbw(0, 1)])
    s.vreads(2, 0, CID, b0 + 1, n - 8); s.vreads(3, 0, CID, b0 + 1, n - 3)
    s.soft(dt, 0, lambda kb, q: dend[(kb, q)] + LAG, lambda kb, q: s.tile_start[(kb, q)])
    s.soft(ALLT[:TX], 1, lambda kb, q: s.tile_end[(kb, q)] + LAG, lambda kb, q: n - 1)
    for x in zero_init(kh): s.xs.append((x, 0, n - 1))
    g = s.mem(dmahalf('V', 1, 0, sVrun, CID) + dmahalf('V', 1, 1, sVrun, CID) + [salu('s_add_u32', sVrun, sVrun, 8192)], 1, 4)
    g = s.mem(ksel(0, 1) + dmahalf('K', 0, 0, sD, CID) + dmahalf('K', 0, 1, sD, CID), max(g, st[2] + 1), 5)
    s.mem(ksel(1, 2) + dmahalf('K', 1, 0, sD, CID) + dmahalf('K', 1, 1, sD, CID), max(g, a0 + 33), 5)
    s.tail = [salu('s_cmp_eq_u32', sR, 0), br('s_cbranch_scc1', f'L2_Td{kh}')]
    return s.emit(f"D1{kh}")

def seg_Z(kh):
    s = Seg()
    pr = PAIRS[kh]
    dt = [(kb, q) for kb in range(4) for q in pr[kb >> 1]]
    st = []
    for kb in range(4): st.append(s.n()); s.qk(kb, pr[kb >> 1], kh)
    b0 = s.n()
    s.lsum(0, pr, True); p0 = s.n(); s.pv(0, 0, pr, True); s.pv(1, 0, pr, True)
    p2 = s.n(); s.pv(2, 0, pr, True); s.pv(3, 0, pr, True)
    n = s.n()
    for kb in range(4): s.kreads(kb, 0, CID, 0, 0)
    s.rs.append((wait(regs=[FB(0, j) for j in range(4)] + [Qf(ks, q) for ks in range(4) for q in range(4)]), 0, 0))
    s.force(st[1], [wait(regs=[FB(1, j) for j in range(4)])])
    s.force(st[2], PP([fbw(2, 3, [('V', 0)]), bar()]))
    s.vreads(0, 0, CID, st[2], b0); s.vreads(1, 0, CID, st[2], b0)
    s.force(p0, [fbw(0, 1)])
    s.vreads(2, 0, CID, b0, p0 + 4); s.vreads(3, 0, CID, b0, p0 + 8)
    s.force(p2, PP([fbw(2, 3), bar()]))
    s.soft(dt, 0, lambda kb, q: min(s.tile_end[(kb, q)] + LAG, b0), lambda kb, q: b0)
    for x in zero_init(kh): s.xs.append((x, 0, n - 1))
    s.tail = [br('s_branch', 'L2_E')]
    return s.emit(f"Z{kh}")

def tile_setup():
    o = [salu('s_sub_u32', sR, sT, 1), salu('s_add_u32', sKrun, sKb, 8192), salu('s_mov_b32', sVrun, sVb),
         salu('s_lshl_b32', sTmp, sTn, 13), salu('s_add_u32', sKn[0], sKb, sTmp), salu('s_add_u32', sVn, sVb, sTmp),
         salu('s_cmp_eq_u32', sPass, 0),
         salu('s_cselect_b32', sKn[0], sKn[0], OOB), salu('s_cselect_b32', sKn[1], sKb, OOB), salu('s_cselect_b32', sVn, sVn, OOB)]
    o += [salu('s_add_u32', sCo[q], sQo[q], WS_CTX) for q in range(2)]
    o += qoffs(sTn)
    o += [salu('s_cmp_eq_u32', sPass, 0)] + [salu('s_cselect_b32', sQo[q], sQo[q], OOB) for q in range(4)]
    o += [valu('v_and_b32', vT0, 15, vLane), valu('v_lshlrev_b32', vT0, 2, vT0)]
    for q in range(2):
        o += [salu('s_lshl_b32', sTmp, sT, 13), salu('s_add_u32', sTmp, sTmp, sGq[q]), salu('s_lshr_b32', sTmp, sTmp, 4),
              salu('s_add_u32', sTmp, sTmp, WS_G), bload(vG[q], vT0, sWS, sTmp)]
    return o
def qoffs(st):
    o = [salu('s_lshl_b32', sTmp, st, 13), salu('s_mul_i32', sD2, sH, 4 * GSTR), salu('s_add_u32', sTmp, sTmp, sD2)]
    o += [salu('s_add_u32', sQo[q], sTmp, sGq[q]) for q in range(4)]
    return o

def make_cd():
    o = []
    t0, t1 = V(SB), V(SB + 1)
    o += [valu('v_and_b32', t0, 15, vLane), valu('v_lshrrev_b32', t1, 4, vLane), valu('v_lshlrev_b32', t1, 2, t1), valu('v_sub_u32', t0, t0, t1),
          valu('v_mov_b32', V(SB + 3), 0xff800000)]
    for q in (0, 3):
        o += [salu('s_xor_b32', sTmp, sRH, 1 if q else 0), salu('s_lshl_b32', sTmp, sTmp, 4), valu('v_add_u32', t1, sTmp, t0)]
        for b in range(2):
            for r in range(4):
                o += [valu('v_cmp_le_i32', 'vcc', b * 16 + r, t1), valu('v_cndmask_b32', Cd(q, b)[r], V(SB + 3), Ci(q)[r], 'vcc')]
    return o

def epilogue():
    o = [lab('L2_E')]
    for db in range(8):
        for q in (2, 3):
            x = dsw('ds_write_b128', vMW, O(db, q), (db * 2 + q - 2) * 1024); x.lds = ('w', ('V', 1), 1); o.append(x)
    for q in (2, 3):
        x = dsw('ds_write_b32', vLW, Lq(q)[0], (q - 2) * 256); x.lds = ('w', ('V', 0), 1); o.append(x)
    o += PP([wait(lgkm=0), bar()])
    lp = [V(PB), V(PB + 1)]
    for q in range(2):
        x = dsr('ds_read_b32', lp[q], vLR, q * 256); x.lds = ('r', ('V', 0), 1, True); o.append(x)
    for i in range(16):
        x = dsr128(V(SB + 4 * i, 4), vMR, i * 1024); x.lds = ('r', ('V', 1), 1); o.append(x)
    o.append(wait(regs=lp + vG))
    o += dmahalf('V', 0, 0, sVn, CID) + dmahalf('V', 0, 1, sVn, CID)
    sc = [V(PB + 2, 2), V(PB + 4, 2)]
    for q in range(2): o.append(valu('v_add_f32', lp[q], lp[q], Lq(q)[0]))
    for q in range(2): o.append(valu('v_rcp_f32', sc[q][0], lp[q]))
    o += [valu('v_min_f32', V(PB + 6), lp[0], lp[1]), valu('v_max_f32', V(PB + 7), lp[0], lp[1]),
          valu('v_add_f32', vChk, lp[0], lp[1])]
    for q in range(2): o += [valu('v_mul_f32', sc[q][0], sc[q][0], vG[q]), valu('v_mov_b32', sc[q][1], sc[q][0])]
    o += [valu('v_cmp_gt_f32', 'vcc', f2u(2.0 ** -40), V(PB + 6)), salu('s_or_b32', sBad, sBad, 'vcc_lo'), salu('s_or_b32', sBad, sBad, 'vcc_hi'),
          valu('v_cmp_lt_f32', 'vcc', f2u(2.0 ** 64), V(PB + 7)), salu('s_or_b32', sBad, sBad, 'vcc_lo'), salu('s_or_b32', sBad, sBad, 'vcc_hi')]
    for x in o[-6:]:
        if x.k == 'salu': x.rd.add('vcc')
    for dp in range(4):
        for q in range(2):
            out = V(PB + 8 + 4 * ((dp * 2 + q) % 6), 4)
            for d in range(2):
                db = 2 * dp + d
                T = V(SB + 4 * (db * 2 + q), 4); Oq = O(db, q)
                if q == 0 and d == 0: o.append(wait(regs=[V(SB + 4 * (db * 2), 16)]))
                o += [valu('v_pk_add_f32', T[0:2], T[0:2], Oq[0:2]), valu('v_pk_add_f32', T[2:4], T[2:4], Oq[2:4]),
                      valu('v_pk_mul_f32', T[0:2], T[0:2], sc[q]), valu('v_pk_mul_f32', T[2:4], T[2:4], sc[q]),
                      valu('v_fma_f32', vChk, T[0], T[1], vChk), valu('v_fma_f32', vChk, T[2], T[3], vChk),
                      valu('v_cvt_pk_bf16_f32', out[2 * d], T[0], T[1]), valu('v_cvt_pk_bf16_f32', out[2 * d + 1], T[2], T[3])]
            o += [salu('s_add_u32', sD2, sCo[q], dp * GSTR), bstore(out, vL16, sWS, sD2, 0, fl=STFL)]
    o += [salu('s_mov_b32', sTmp, 0x207), valu('v_cmp_class_f32', 'vcc', vChk, sTmp),
          salu('s_or_b32', sBad, sBad, 'vcc_lo'), salu('s_or_b32', sBad, sBad, 'vcc_hi')]
    for x in o[-2:]: x.rd.add('vcc')
    return o

def maxpass():
    o = [lab('L2_max')]
    KF = [V(PB + 4 * i, 4) for i in range(4)]
    mx = [V(PB + 16 + q) for q in range(4)]; qi = [V(PB + 20 + q) for q in range(4)]
    t0, t1, ninf = V(PB + 24), V(PB + 25), V(PB + 26)
    sI, sE, sO = S(70), S(71), S(72)
    o += [wait(vm=0), valu('v_mov_b32', ninf, 0xff800000),
          valu('v_and_b32', t0, 15, vLane), valu('v_lshrrev_b32', t1, 4, vLane), valu('v_lshlrev_b32', t1, 2, t1), valu('v_sub_u32', t0, t0, t1)]
    for q in range(4):
        o += [salu('s_lshl_b32', sTmp, sT, 13), salu('s_add_u32', sTmp, sTmp, sGq[q]), salu('s_lshr_b32', sTmp, sTmp, 6),
              valu('v_add_u32', qi[q], sTmp, t0), valu('v_mov_b32', mx[q], ninf)]
    o += [salu('s_mov_b32', sI, 0), salu('s_add_u32', sE, sT, 1), salu('s_lshl_b32', sE, sE, 7),
          salu('s_mul_i32', sO, sH, 4 * GSTR), salu('s_add_u32', sO, sO, WS_K)]
    lp = [lab('L2_maxl')]
    for ks in range(4): lp += [salu('s_add_u32', sD2, sO, ks * GSTR), bload(KF[ks], vL16, sWS, sD2)]
    lp.append(wait(vm=0))
    for q in range(4):
        for ks in range(4): lp.append(mfma(St(0, q), KF[ks], Qf(ks, q), 0 if ks == 0 else None))
    for q in range(4):
        for r in range(4):
            lp += [salu('s_add_u32', sTmp, sI, r), valu('v_cmp_le_i32', 'vcc', sTmp, qi[q]),
                   valu('v_cndmask_b32', t0, ninf, St(0, q)[r], 'vcc'), valu('v_max_f32', mx[q], mx[q], t0)]
    lp += [salu('s_add_u32', sO, sO, 1024), salu('s_add_u32', sI, sI, 16), salu('s_cmp_lt_u32', sI, sE), br('s_cbranch_scc1', 'L2_maxl')]
    e = []
    for q in range(4):
        e += [valu('v_mov_b32', t0, mx[q]), valu('v_permlane32_swap_b32', mx[q], t0), valu('v_max_f32', mx[q], mx[q], t0),
              valu('v_mov_b32', t0, mx[q]), valu('v_permlane16_swap_b32', mx[q], t0), valu('v_max_f32', mx[q], mx[q], t0)]
        e += [valu('v_sub_f32', Ci(q)[r], 0, mx[q]) for r in range(4)]
    e += make_cd() + [br('s_branch', 'L2_go')]
    return o, lp, e

def gen_l2():
    head = [salu('s_cmp_ge_u32', S(2), 256), br('s_cbranch_scc1', 'L2_exit')] + stamp_begin() + [
        sload(sP[0:2], S(0, 2), 96), sload(sP[2:4], S(0, 2), 40), sload(sP[4:6], S(0, 2), 64),
        valu('v_lshrrev_b32', vT0, 6, V(0)), valu('v_and_b32', vLane, 63, V(0)),
        valu('v_readfirstlane_b32', sWave, vT0)] + code_touch('L2', 'L2_end', vLane, sWave, V(144, 3), S(72, 3), 3) + [
        salu('s_and_b32', sH, S(2), 31), salu('s_lshr_b32', sPp, S(2), 5),
        salu('s_and_b32', sRH, sWave, 1), salu('s_lshr_b32', sKH, sWave, 1),
        salu('s_lshl_b32', sM, sWave, 13),
        salu('s_lshl_b32', sTmp, sH, 2), salu('s_add_u32', sTmp, sTmp, sWave), salu('s_mul_i32', sTmp, sTmp, GSTR),
        salu('s_add_u32', sKb, sTmp, WS_K), salu('s_add_u32', sVb, sTmp, WS_V),
        valu('v_lshlrev_b32', vL16, 4, vLane), valu('v_add_u32', vL16b, 4096, vL16),
        salu('s_mov_b32', sBad, 0), salu('s_mov_b32', sSafe, 0)] + ([valu('v_mov_b32', V(252), 1)] if PROF else [])
    for q in range(4):
        head += [salu('s_lshl_b32', sTmp, sKH, 1), salu('s_xor_b32', sTmp, sTmp, q), salu('s_add_u32', sD, sTmp, sRH), salu('s_and_b32', sD, sD, 1),
                 salu('s_lshl_b32', sTmp, sTmp, 1), salu('s_add_u32', sTmp, sTmp, sD), salu('s_lshl_b32', sGq[q], sTmp, 10)]
    head += [wait(lgkm=0)] + srd(sWS, sP[0:2], 256 << 20)
    start = [lab('L2_start'), salu('s_sub_u32', sT, 15, sPp), salu('s_mov_b32', sTn, sPp), salu('s_mov_b32', sPass, 0),
             salu('s_lshl_b32', sTmp, sT, 13), salu('s_add_u32', sD, sKb, sTmp), salu('s_add_u32', sVn, sVb, sTmp)]
    start += dmahalf('K', 0, 0, sD, CID) + dmahalf('K', 0, 1, sD, CID) + qoffs(sT) + qloads()
    start += dmahalf('K', 1, 0, sKb, CID) + dmahalf('K', 1, 1, sKb, CID) + dmahalf('V', 0, 0, sVn, CID) + dmahalf('V', 0, 1, sVn, CID)
    for c in range(2):
        start += [salu('s_mov_b32', sTmp, sKH) if c == 0 else salu('s_sub_u32', sTmp, 3, sKH),
                  salu('s_lshl_b32', sD, sTmp, 11), valu('v_add_u32', vK[c], sD, vL16),
                  salu('s_lshr_b32', sD, sTmp, 1), salu('s_lshl_b32', sD, sD, 12), salu('s_and_b32', sTmp, sTmp, 1), salu('s_lshl_b32', sTmp, sTmp, 10),
                  salu('s_add_u32', sD, sD, sTmp), salu('s_add_u32', sD, sD, VB0), valu('v_add_u32', vV[c], sD, vL16)]
    start += [salu('s_lshl_b32', sTmp, sWave, 14), salu('s_add_u32', sTmp, sTmp, MRG), valu('v_add_u32', vMW, sTmp, vL16),
              salu('s_xor_b32', sD, sWave, 2), salu('s_lshl_b32', sTmp, sD, 14), salu('s_add_u32', sTmp, sTmp, MRG), valu('v_add_u32', vMR, sTmp, vL16),
              valu('v_lshlrev_b32', vT0, 2, vLane),
              salu('s_lshl_b32', sTmp, sD, 13), salu('s_add_u32', sTmp, sTmp, VB0), valu('v_add_u32', vLW, sTmp, vT0),
              salu('s_add_u32', sTmp, sM, VB0), valu('v_add_u32', vLR, sTmp, vT0),
              valu('v_mov_b32', vT0, 0x3f803f80)]
    start += srd(sPF[0], sP[2:4], 4096 * 1152) + srd(sPF[1], sP[4:6], 4608 * 1152) + [
        salu('s_lshl_b32', sTmp, S(2), 2), salu('s_add_u32', sTmp, sTmp, sWave), salu('s_mul_i32', sPO[0], sTmp, 6 * 768), salu('s_mul_i32', sPO[1], sTmp, 7 * 768),
        valu('v_min_u32', vPFa, 5, vLane), valu('v_lshlrev_b32', vPFa, 7, vPFa)]
    start += [valu('v_accvgpr_write_b32', ONES[i], vT0) for i in range(4)]
    start += [valu('v_mov_b32', V(CI + i), 0) for i in range(16)] + make_cd()
    tile = [lab('L2_tile')] + tile_setup() + [salu('s_cmp_lg_u32', sSafe, 0), br('s_cbranch_scc1', 'L2_max')]
    go = [lab('L2_go')] + PP([wait(tags=[('K', 0)], lgkm=0), bar()]) + [
          salu('s_cmp_eq_u32', sT, 0), br('s_cbranch_scc1', 'L2_Z'), salu('s_cmp_eq_u32', sKH, 1), br('s_cbranch_scc1', 'L2_D1')]
    D = [seg_D1(0), [lab('L2_D1')] + seg_D1(1)]
    Hbd = [seg_Hb(0, 0, 'L2_H1'), seg_Hb(0, 1)]
    Ha = [seg_Ha(0), [lab('L2_H1')] + seg_Ha(1)]
    Hb = [seg_Hb(0, None, 'L2_H1'), seg_Hb(1)]
    Tbd = [[lab('L2_Td0')] + seg_Tb(0, 0, 'L2_Tc1'), [lab('L2_Td1')] + seg_Tb(0, 1, 'L2_Tc1')]
    Tb = [[lab('L2_T0')] + seg_Tb(0), [lab('L2_T1')] + seg_Tb(1)]
    Tc = [seg_Tc(0), [lab('L2_Tc1')] + seg_Tc(1, 'L2_E')]
    zsel = [lab('L2_Z'), salu('s_cmp_eq_u32', sKH, 1), br('s_cbranch_scc1', 'L2_Z1')]
    Z = [seg_Z(0), [lab('L2_Z1')] + seg_Z(1)]
    E = epilogue()
    nxt = [salu('s_mov_b32', sT, sTn), salu('s_add_u32', sPass, sPass, 1), salu('s_cmp_eq_u32', sPass, 1), br('s_cbranch_scc1', 'L2_tile')]
    fin = [salu('s_cmp_lg_u32', sSafe, 0), br('s_cbranch_scc1', 'L2_done'),
           wait(tags=[('K', 0), ('K', 1), ('V', 0)], lgkm=0), bar(),
           salu('s_lshl_b32', sTmp, sWave, 2), valu('v_mov_b32', vT0, sTmp), valu('v_mov_b32', vT1, sBad), dsw('ds_write_b32', vT0, vT1),
           valu('v_mov_b32', vT0, 0), wait(lgkm=0), bar(), dsr128(V(SB, 4), vT0, 0), wait(lgkm=0),
           valu('v_or_b32', V(SB), V(SB), V(SB + 1)), valu('v_or3_b32', V(SB), V(SB), V(SB + 2), V(SB + 3)),
           valu('v_readfirstlane_b32', sSafe, V(SB)), salu('s_cmp_eq_u32', sSafe, 0), br('s_cbranch_scc1', 'L2_done'),
           wait(vm=0), bar(), br('s_branch', 'L2_start')]
    done = [lab('L2_done')] + prof_end(1, V(250), V(253), sWS, sWave) + prof_end(4, V(251), V(253), sWS, sWave) + stamp_end(1, sWS, sWave) + [lab('L2_exit'), raw('s_endpgm', 'br')]
    m0, m1, m2 = maxpass()
    def tilepath(t, kh, safe=False):
        p = [tile] + ([m0, m1, m1, m2] if safe else []) + [go]
        if t == 0: return p + [zsel, Z[kh], E, nxt]
        p += [D[kh]]
        if t == 1: return p + [Tbd[kh], Tc[1], E, nxt]
        p += [Hbd[kh]]
        n = 1
        while True:
            p.append(Ha[n & 1])
            if n + 1 == t: break
            p.append(Hb[n & 1]); n += 1
        return p + [Tb[n & 1], Tc[(n & 1) ^ 1], E, nxt]
    paths = []
    for kh in range(2):
        for p in range(8):
            paths.append([head, start] + tilepath(15 - p, kh) + tilepath(p, kh) + [fin, done])
        paths.append([head, start] + tilepath(9, kh) + tilepath(0, kh) + [fin, start] + tilepath(8, kh, True) + tilepath(1, kh, True) + [fin, done])
    finish(paths, 'L2', verbose=False)
    for p in paths: verify_lds(p, 'L2')
    order = head + start + tile + go + D[0] + Hbd[0] + D[1] + Hbd[1] + Ha[1] + Hb[1] + Ha[0] + Hb[0] + Tbd[0] + Tbd[1] + Tb[0] + Tc[1] + \
        zsel + Z[0] + Z[1] + m0 + m1 + m2 + Tb[1] + Tc[0] + E + nxt + fin + done
    return text(order) + 'L2_end:\n'

if __name__ == '__main__':
    t = gen_l2()
    print(len(t), t.count('\n'))
```

```python
from gemm import *

LDS = 3 * 53248
STG = 53248
SLAB = 32 * 4 * 18 * 1024
sW2, sWo, sWC, sWS = S(4, 4), S(8, 4), S(12, 4), S(16, 4)
sWave, sSl, sHf, sTT, sWt, sWc = S(24), S(25), S(26), S(27), S(28), S(29)
sS, sStop, sRo, sRoD = S(30), S(31), S(32), S(33)
sAo, sWoff, sWoff2, sT, sM4, sM1 = S(34), S(35), S(36), S(37), S(38), S(39)
sAoC, sWoffC = S(40), S(41)
sSt = [S(42 + i) for i in range(5)]
sP = S(48, 16)
OOB = 0x10000000
vLane = V(15)
vTRb = [V(1 + i) for i in range(4)]; vTSb, vARb = V(5), V(6)
vTR = [V(7 + i) for i in range(4)]; vTS, vAR = V(11), V(12)
vL16, vL16b = V(13), V(14)
vD = [V(16 + i) for i in range(4)]; vS = V(20)
vSC = [V(22 + 2 * i, 2) for i in range(4)]
ACC = 32
TMP = 176
def acc(cb, tb): return V(ACC + 4 * (cb * 4 + tb), 4)
def act(kl, tb): return A(4 * (tb * 2 + kl), 4)
def WF(cb, kl): return A(32 + 4 * (cb * 2 + kl), 4)

def wreads(grp):
    o = []
    for cb in range(3 * grp, 3 * grp + 3):
        for kl in range(2):
            for h in range(2):
                if cb < 8: x = tr(WF(cb, kl)[2 * h:2 * h + 2], vTR[cb & 3], kl * 16384 + (cb >> 2) * 4096 + h * 2048)
                else: x = tr(WF(cb, kl)[2 * h:2 * h + 2], vTS, kl * 2048 + h * 1024)
                o.append(x)
    return o
def areads(tb):
    return [dsr128(act(kl, tb), vAR, (tb >> 1) * 4096 + kl * 2048 + (tb & 1) * 1024) for kl in range(2)]

def dmas():
    g = []
    o = [salu('s_mov_b32', 'm0', sRoD)]
    o += [dma(vL16 if i < 2 else vL16b, sWS, sAo, i * 1024, tag='st') for i in range(4)]
    g.append(o)
    o = [salu('s_add_u32', 'm0', sRoD, sM1), dma(vS, sWC, sWoff, 0, tag='st')]
    g.append(o)
    for kl in range(2):
        o = [salu('s_add_u32', 'm0', sRoD, 16384 + kl * 16384)]
        if kl: o.append(salu('s_add_u32', sWoff2, sWoff, 32 * 1152))
        o += [dma(vD[i], sWC, sWoff2 if kl else sWoff, i * 1024, tag='st') for i in range(4)]
        g.append(o)
    return g
def advance():
    return [salu('s_add_u32', sRoD, sRo, sM4), salu('s_add_u32', sRo, sRo, STG), salu('s_cmp_eq_u32', sRo, LDS), salu('s_cselect_b32', sRo, 0, sRo)]
def advance2():
    return [salu('s_add_u32', sAo, sAo, 2 * GSTR), salu('s_add_u32', sWoff, sWoff, 64 * 1152),
            salu('s_cmp_eq_u32', sS, 6),
            salu('s_cselect_b32', sAo, sAoC, sAo), salu('s_cselect_b32', sWoff, sWoffC, sWoff),
            salu('s_cselect_b32', sWC[0], sWo[0], sWC[0]), salu('s_cselect_b32', sWC[1], sWo[1], sWC[1]), salu('s_cselect_b32', sWC[2], sWo[2], sWC[2]),
            salu('s_cmp_eq_u32', sS, 14),
            salu('s_cselect_b32', sAo, OOB, sAo), salu('s_cselect_b32', sWoff, OOB, sWoff),
            salu('s_add_u32', sS, sS, 1)]
def vadv():
    return [valu('v_add_u32', d, sRo, b) for d, b in zip([vTR[0], vTR[1], vTR[2], vAR, vTR[3], vTS], [vTRb[0], vTRb[1], vTRb[2], vARb, vTRb[3], vTSb])]

BAR = 44
def body(kind):
    bb = []; first = {}; last = {}
    for grp in range(3):
        for tb in range(4):
            for cb in range(3 * grp, 3 * grp + 3):
                first[(cb, tb)] = len(bb)
                for kl in range(2): bb.append(mfma(acc(cb, tb), WF(cb, kl), act(kl, tb)))
                last[(cb, tb)] = len(bb) - 1
    n = len(bb)
    forced = {}; rs = []; ms = []; xs = []
    F = lambda g, it: forced.setdefault(g, []).extend(it)
    W = lambda grp: [WF(cb, kl) for cb in range(3 * grp, 3 * grp + 3) for kl in range(2)]
    F(0, [wait(regs=W(0) + [act(0, 0), act(1, 0)])])
    for tb in range(1, 4): F(6 * tb, [wait(regs=[act(0, tb), act(1, tb)])])
    F(24, [wait(regs=W(1))])
    for x in areads(3): rs.append((x, 1, 3))
    for i, x in enumerate(wreads(1)): rs.append((x, 2 + i, 18))
    for i, x in enumerate(wreads(2)): rs.append((x, 16 + i * 2, BAR - 5))
    g = dmas()
    if kind != 'F':
        F(BAR, prof_t(90) + [wait(regs=W(2), vm=13), bar()] + (prof_t(92) + [wait(lgkm=0)] if PROF else []) + prof_dyn(V(250), V(251), vLane, sS, 90, 1) + prof_dyn(V(250), V(251), vLane, sS, 92, 21))
        for x in vadv(): rs.append((x, BAR + 1, BAR + 5))
        w0 = wreads(0)
        seq = [(x, BAR + 4 + i) for i, x in enumerate(w0[:6])] + [(x, 55) for x in areads(0)] + [(x, 57 + i) for i, x in enumerate(w0[6:])] + \
              [(x, 61) for x in areads(1)] + [(x, 67) for x in areads(2)]
        seq.sort(key=lambda t: t[1])
        for x, e in seq: rs.append((x, e, e + 3))
        def mem(items, g0, step):
            for x in items:
                ms.append((x, g0, g0 + 4) if x.k in VM else (x, max(g0 - 2, 0), g0 - 1))
                if x.k in VM: g0 += step
            return g0
        mem(g[2] + g[3], 2, 4)
        for x in advance2() + advance(): ms.append((x, 30, BAR - 1))
        mem(g[0] + g[1], BAR + 4, 5)
    else:
        F(48, [wait(regs=W(2))])
    if kind == 'S':
        for grp in range(3):
            for tb in range(4):
                for cb in range(3 * grp, 3 * grp + 3):
                    d = max(first[(cb, tb)] - 1, 0)
                    a = acc(cb, tb)
                    for h in range(4): xs.append((valu('v_mul_f32', a[h], a[h], vSC[tb][0]), max(0, d - 8), d))
        xs.sort(key=lambda t: t[2])
    if kind == 'F':
        ev = []
        for tb in range(4):
            for p in range(4): ev.append((last[(2 * p + 1, tb)], [(2 * p, tb), (2 * p + 1, tb)], sSt[tb], p * 1024))
        for p in range(2): ev.append((last[(8, 2 * p + 1)], [(8, 2 * p), (8, 2 * p + 1)], sSt[4], p * 1024))
        ev.sort(key=lambda t: t[0])
        for j, (l, tiles, so, io) in enumerate(ev):
            out = V(TMP + 4 * j, 4)
            e = min(l + 5, n)
            for q, t in enumerate(tiles):
                a = acc(*t)
                xs += [(valu('v_cvt_pk_bf16_f32', out[2 * q], a[0], a[1]), e, n), (valu('v_cvt_pk_bf16_f32', out[2 * q + 1], a[2], a[3]), e, n)]
            xs.append((bstore(out, vL16, sWS, so, io, fl=STFL), e, n))
    X = os.environ.get("X3", "")
    if 'd' in X: ms = [m for m in ms if m[0].k != 'dma']
    if 'r' in X: rs = [m for m in rs if m[0].k != 'dsr']
    if 't' in X: rs = [m for m in rs if not m[0].t.startswith('T')]
    if 'l' in X: rs = [m for m in rs if not m[0].t.startswith('L')]
    if 'b' in X:
        for g_ in forced: forced[g_] = [x for x in forced[g_] if x.k != 'bar']
    clip = lambda st: [(x, min(e, n), min(d, n)) for x, e, d in st]
    print("L3", kind, end="")
    return schedule(bb, forced, [clip(rs), clip(ms), clip(xs)], verbose=1)

def gen_l3():
    P = lambda i: sP[2 * i:2 * i + 2]
    t0, t1, t2 = V(TMP), V(TMP + 1), V(TMP + 2)
    head = [salu('s_cmp_ge_u32', S(2), 256), br('s_cbranch_scc1', 'L3_exit')] + stamp_begin() + [
        sload(P(0), S(0, 2), 40), sload(P(1), S(0, 2), 64), sload(P(2), S(0, 2), 96),
        valu('v_lshrrev_b32', t0, 6, V(0)), valu('v_and_b32', vLane, 63, V(0)),
        valu('v_readfirstlane_b32', sWave, t0)] + code_touch('L3', 'L3_end', vLane, sWave, V(244, 3), S(72, 3), 1) + [
        salu('s_and_b32', sSl, S(2), 7), salu('s_bfe_u32', sHf, S(2), 3 | (1 << 16)), salu('s_lshr_b32', sTT, S(2), 4),
        salu('s_and_b32', sWt, sWave, 1), salu('s_lshr_b32', sWc, sWave, 1),
        salu('s_lshl_b32', sM4, sWave, 12), salu('s_mul_i32', sM1, sWave, 3072), salu('s_sub_u32', sM1, 49152, sM1),
        valu('v_lshlrev_b32', vL16, 4, vLane), valu('v_add_u32', vL16b, GSTR - 2048, vL16),
        salu('s_lshl_b32', sT, sTT, 13), salu('s_lshl_b32', sAo, sWave, 11), salu('s_add_u32', sT, sT, sAo),
        salu('s_mul_i32', sAo, sSl, 18 * GSTR), salu('s_add_u32', sAo, sAo, sT), salu('s_add_u32', sAo, sAo, WS_H),
        salu('s_mul_i32', sAoC, sSl, 16 * GSTR), salu('s_add_u32', sAoC, sAoC, sT), salu('s_add_u32', sAoC, sAoC, WS_CTX),
        salu('s_mul_i32', sWoff, sSl, 18 * 32 * 1152), salu('s_mul_i32', sWoffC, sSl, 16 * 32 * 1152),
        valu('v_lshrrev_b32', t0, 3, vLane), valu('v_and_b32', t1, 6, t0), valu('v_and_b32', t2, 7, vLane), valu('v_xor_b32', t1, t1, t2),
        valu('v_lshlrev_b32', t1, 4, t1), salu('s_movk_i32', sT, 1152), valu('v_mad_u32_u24', vD[0], t0, sT, t1),
        salu('s_mul_i32', sT, sHf, 640), salu('s_lshl_b32', sS, sWave, 7), salu('s_add_u32', sT, sT, sS), valu('v_add_u32', vD[0], sT, vD[0])]
    head += [valu('v_add_u32', vD[i], i * (9216 - 1024), vD[0]) for i in range(1, 4)]
    head += [valu('v_lshrrev_b32', t0, 2, vLane), valu('v_lshrrev_b32', t1, 3, vLane), valu('v_and_b32', t1, 2, t1), valu('v_and_b32', t2, 3, vLane),
             valu('v_xor_b32', t1, t1, t2), valu('v_lshlrev_b32', t1, 4, t1), salu('s_movk_i32', sT, 1152), valu('v_mad_u32_u24', vS, t0, sT, t1),
             salu('s_mul_i32', sT, sWave, 16 * 1152), salu('s_lshl_b32', sS, sHf, 6), salu('s_add_u32', sT, sT, sS), salu('s_add_u32', sT, sT, 512),
             valu('v_add_u32', vS, sT, vS),
             salu('s_mov_b32', sRoD, sM4),
             wait(lgkm=0)]
    head += srd(sWS, P(2), 256 << 20) + srd(sWC, P(1), 4608 * 1152) + srd(sWo, P(0), 4096 * 1152)
    def stage(parts):
        g = dmas(); o = []
        for p in parts: o += g[p]
        return o
    nxt = lambda: [salu('s_add_u32', sAo, sAo, 2 * GSTR), salu('s_add_u32', sWoff, sWoff, 64 * 1152), salu('s_add_u32', sRoD, sRoD, STG)]
    head += stage([2, 0, 3, 1]) + nxt() + stage([2, 0, 3, 1]) + nxt() + stage([0, 1])
    head += [valu('v_and_b32', t0, 15, vLane), valu('v_lshlrev_b32', t0, 2, t0),
             salu('s_lshl_b32', sT, sTT, 1), salu('s_add_u32', sT, sT, sWt), salu('s_lshl_b32', sSt[0], sT, 8), salu('s_add_u32', sSt[0], sSt[0], WS_G + 8192)]
    head += [bload(vSC[tb][0], t0, sWS, sSt[0], tb * 64, tag='g') for tb in range(4)]
    head += [salu('s_lshl_b32', sT, sT, 1), salu('s_add_u32', sT, sT, sHf), salu('s_lshl_b32', sT, sT, 1), salu('s_add_u32', sT, sT, sWc),
             salu('s_mul_i32', sT, sT, 18 * 1024), salu('s_mul_i32', sSt[1], sSl, SLAB), salu('s_add_u32', sT, sT, sSt[1])]
    head += [salu('s_add_u32', sSt[i], sT, WS_P + i * 4096) for i in range(5)]
    g_, r_ = V(TMP + 3), V(TMP + 4)
    head += [valu('v_lshrrev_b32', t0, 2, vLane),
             valu('v_and_b32', t1, 6, t0), valu('v_lshlrev_b32', t1, 4, t1),
             valu('v_and_b32', t2, 3, vLane), valu('v_lshlrev_b32', t2, 3, t2),
             valu('v_lshlrev_b32', g_, 7, t0), valu('v_add3_u32', vTRb[0], g_, t1, t2),
             salu('s_lshl_b32', sT, sWc, 13), salu('s_add_u32', sT, sT, 16384), valu('v_add_u32', vTRb[0], sT, vTRb[0])]
    head += [valu('v_xor_b32', vTRb[i], i * 32, vTRb[0]) for i in range(1, 4)]
    head += [valu('v_lshlrev_b32', g_, 6, t0), valu('v_bfe_u32', t1, vLane, 4, 1), valu('v_xor_b32', t1, sWc, t1), valu('v_lshlrev_b32', t1, 5, t1),
             valu('v_add3_u32', vTSb, g_, t1, t2), valu('v_add_u32', vTSb, 49152, vTSb),
             salu('s_lshl_b32', sT, sWt, 13), valu('v_add_u32', vARb, sT, vL16),
             salu('s_mov_b32', sRo, 0), salu('s_mov_b32', sS, 0), salu('s_mov_b32', sStop, 9)]
    head += vadv()
    head += [valu('v_mov_b32', V(ACC + i), 0) for i in range(144)]
    head += prof_now(V(250), 1) + [wait(vm=13 + 5 + 4), bar()] + prof_now(V(250), 21) + wreads(0)[:4] + areads(0) + wreads(0)[4:] + areads(1) + areads(2)
    L = [lab('L3_L')] + body('L') + [salu('s_cmp_lg_u32', sS, sStop), br('s_cbranch_scc1', 'L3_L')]
    sel = [salu('s_cmp_eq_u32', sS, 16), br('s_cbranch_scc1', 'L3_F'), salu('s_mov_b32', sStop, 16), wait(tags=['g'])]
    Sb = body('S') + [br('s_branch', 'L3_L')]
    Fb = [lab('L3_F')] + body('F') + prof_end(2, V(250), V(251), sWS, sWave) + stamp_end(2, sWS, sWave) + [lab('L3_exit'), raw('s_endpgm', 'br')]
    paths = [[head] + [L] * 9 + [sel, Sb] + [L] * 6 + [sel[:2], Fb]]
    finish(paths, 'L3', verbose=True)
    return text(head + L + sel + Sb + Fb) + 'L3_end:\n'

if __name__ == '__main__':
    t = gen_l3()
    print(len(t), t.count('\n'))
    open('l3_dbg.s', 'w').write(t)
```

```python
import re

class Ins:
    __slots__ = ('t', 'k', 'rd', 'wr', 'cost', 'tag', 'need', 'C', 'AB', 'n_lgkm', 'n_vm', 'lds')
    def __init__(s, t, k, rd=(), wr=(), cost=1, tag=None):
        s.t = t; s.k = k; s.rd = set(rd); s.wr = set(wr); s.cost = cost; s.tag = tag
        s.need = None; s.C = None; s.AB = None; s.n_lgkm = None; s.n_vm = None; s.lds = None
    def __repr__(s): return s.t

def R(kind, first, n=1):
    return [f"{kind}{first+i}" for i in range(n)]

class Reg:
    def __init__(s, kind, first, n=1): s.kind = kind; s.first = first; s.n = n
    def __str__(s):
        return f"{s.kind}{s.first}" if s.n == 1 else f"{s.kind}[{s.first}:{s.first+s.n-1}]"
    def regs(s): return R(s.kind, s.first, s.n)
    def __getitem__(s, i):
        if isinstance(i, slice):
            a = i.start or 0; b = i.stop if i.stop is not None else s.n
            assert 0 <= a < b <= s.n
            return Reg(s.kind, s.first + a, b - a)
        assert 0 <= i < s.n
        return Reg(s.kind, s.first + i, 1)
def V(f, n=1): return Reg('v', f, n)
def A(f, n=1): return Reg('a', f, n)
def S(f, n=1): return Reg('s', f, n)

def _regs(x):
    if isinstance(x, Reg): return x.regs()
    if isinstance(x, str):
        y = x.strip('-|')
        if y in ('vcc', 'exec', 'm0', 'scc'): return [y]
        m = re.fullmatch(r'([vas])(\d+)', y)
        if m: return [y]
    return []

def fmt(x):
    if isinstance(x, float): return repr(x)
    if isinstance(x, int):
        return str(x) if -16 <= x <= 64 else hex(x & 0xffffffff)
    return str(x)

def mfma(D, Aop, Bop, C=None):
    if C is None: C = D
    if C is D or (isinstance(C, Reg) and C.kind == D.kind and C.first == D.first):
        t = f"M{D.kind}{Aop.kind}{Bop.kind} {D.first},{Aop.first},{Bop.first}"
    elif isinstance(C, int):
        t = f"Z{D.kind}{Aop.kind}{Bop.kind} {D.first},{Aop.first},{Bop.first}"
    else:
        assert C.kind == D.kind
        t = f"C{D.kind}{Aop.kind}{Bop.kind} {D.first},{Aop.first},{Bop.first},{C.first}"
    rd = Aop.regs() + Bop.regs() + _regs(C)
    i = Ins(t, 'mfma', rd, D.regs(), cost=2)
    i.C = tuple(_regs(C)); i.AB = set(Aop.regs() + Bop.regs())
    return i

MACROS = ""
for d in 'va':
    for a in 'va':
        for b in 'va':
            MACROS += f".macro M{d}{a}{b} d,a,b\n v_mfma_f32_16x16x32_bf16 {d}[\\d:\\d+3], {a}[\\a:\\a+3], {b}[\\b:\\b+3], {d}[\\d:\\d+3]\n.endm\n"
            MACROS += f".macro Z{d}{a}{b} d,a,b\n v_mfma_f32_16x16x32_bf16 {d}[\\d:\\d+3], {a}[\\a:\\a+3], {b}[\\b:\\b+3], 0\n.endm\n"
            MACROS += f".macro C{d}{a}{b} d,a,b,c\n v_mfma_f32_16x16x32_bf16 {d}[\\d:\\d+3], {a}[\\a:\\a+3], {b}[\\b:\\b+3], {d}[\\c:\\c+3]\n.endm\n"
for d in 'va':
    MACROS += f".macro T{d} d,p,o\n ds_read_b64_tr_b16 {d}[\\d:\\d+1], v\\p offset:\\o\n.endm\n"
    MACROS += f".macro L{d} d,p,o\n ds_read_b128 {d}[\\d:\\d+3], v\\p offset:\\o\n.endm\n"
MACROS += ".macro PK d,a,b\n v_cvt_pk_bf16_f32 v\\d, v\\a, v\\b\n.endm\n"

TRANS = ('v_exp_f32', 'v_rcp_f32', 'v_log_f32', 'v_rsq_f32', 'v_sqrt_f32')
def valu(op, dst, *src, extra_rd=(), extra_wr=(), mods=""):
    k = 'trans' if op in TRANS else 'valu'
    if op.startswith('v_permlane'): k = 'perm'
    if op.startswith('v_readfirstlane') or op.startswith('v_readlane'): k = 'rfl'
    rd = list(extra_rd)
    for x in src: rd += _regs(x)
    wr = _regs(dst) + list(extra_wr)
    if k == 'perm':
        rd += _regs(dst); wr += _regs(src[0])
    if op.startswith('v_fmac') or op.startswith('v_dot2c'): rd += _regs(dst)
    if op == 'v_cvt_pk_bf16_f32' and all(isinstance(x, Reg) and x.kind == 'v' for x in (dst,) + src):
        t = f"PK {dst.first},{src[0].first},{src[1].first}"
    else:
        t = f"{op} {fmt(dst)}, " + ", ".join(fmt(x) for x in src) + mods
    return Ins(t, k, rd, wr, cost=2 if k == 'trans' else 1)

def salu(op, dst, *src):
    rd = []
    for x in src: rd += _regs(x)
    wr = _regs(dst)
    if op.startswith('s_cmp') or op.startswith('s_bitcmp'):
        rd += _regs(dst); wr = ['scc']
    elif op.startswith('s_cselect') or op.startswith('s_addc') or op.startswith('s_subb'):
        rd.append('scc')
    if op.split('_')[1] in ('add', 'sub', 'addc', 'subb', 'and', 'or', 'xor', 'lshl', 'lshr', 'min', 'max', 'bfe', 'ashr', 'andn2'): wr = wr + ['scc']
    t = f"{op} {fmt(dst)}" + "".join(", " + fmt(x) for x in src)
    return Ins(t, 'salu', rd, wr)

def tr(dst, addr, off):
    assert dst.n == 2 and 0 <= off < 65536
    i = Ins(f"T{dst.kind} {dst.first},{addr.first},{off}", 'dsr', addr.regs(), dst.regs())
    return i
def dsr128(dst, addr, off):
    assert dst.n == 4 and 0 <= off < 65536
    return Ins(f"L{dst.kind} {dst.first},{addr.first},{off}", 'dsr', addr.regs(), dst.regs())
def dsr(op, dst, addr, off=0):
    return Ins(f"{op} {dst}, {addr} offset:{off}", 'dsr', addr.regs(), dst.regs())
def dsw(op, addr, src, off=0):
    assert 0 <= off < 65536
    return Ins(f"{op} {addr}, {src} offset:{off}", 'dsw', addr.regs() + src.regs(), ())
def bload(dst, voff, srd, soff, off=0, tag=None, fl=""):
    op = {1: 'buffer_load_dword', 2: 'buffer_load_dwordx2', 4: 'buffer_load_dwordx4'}[dst.n]
    assert 0 <= off < 4096
    o = f" offset:{off}" if off else ""
    return Ins(f"{op} {dst}, {voff}, {srd}, {fmt(soff)} offen{o}{fl}", 'vld', voff.regs() + srd.regs() + _regs(soff), dst.regs(), tag=tag)
def bstore(src, voff, srd, soff, off=0, tag=None, fl=""):
    op = {1: 'buffer_store_dword', 2: 'buffer_store_dwordx2', 4: 'buffer_store_dwordx4'}[src.n]
    assert 0 <= off < 4096
    o = f" offset:{off}" if off else ""
    i = Ins(f"{op} {src}, {voff}, {srd}, {fmt(soff)} offen{o}{fl}", 'vst', src.regs() + voff.regs() + srd.regs() + _regs(soff), (), tag=tag)
    i.AB = set(src.regs()) if src.n >= 3 else set()
    return i
def dma(voff, srd, soff, off=0, tag=None, fl=""):
    assert 0 <= off < 4096
    o = f" offset:{off}" if off else ""
    return Ins(f"buffer_load_dwordx4 {voff}, {srd}, {fmt(soff)} offen{o}{fl} lds", 'dma', voff.regs() + srd.regs() + _regs(soff) + ['m0'], (), tag=tag)
def sload(dst, base, off):
    op = {1: 's_load_dword', 2: 's_load_dwordx2', 4: 's_load_dwordx4', 8: 's_load_dwordx8'}[dst.n]
    return Ins(f"{op} {dst}, {base}, {off}", 'smem', base.regs(), dst.regs())
def wait(regs=(), tags=(), lgkm=None, vm=None):
    i = Ins("s_waitcnt ?", 'wait')
    rs = set()
    for x in regs: rs.update(_regs(x))
    i.need = (rs, set(tags)); i.n_lgkm = lgkm; i.n_vm = vm
    return i
def bar(): return Ins("s_barrier", 'bar')
def lab(n): return Ins(f"{n}:", 'lab', cost=0)
def br(op, target): return Ins(f"{op} {target}", 'br', ['scc'] if 'scc' in op else (['vcc'] if 'vcc' in op else []))
def nop(n): return Ins(f"s_nop {n}", 'nop')
def raw(t, k='salu', rd=(), wr=()): return Ins(t, k, rd, wr)

def klass(i):
    k = i.k
    if k in ('valu', 'trans', 'perm', 'rfl'): return 2
    if k in ('dsr', 'dsw', 'vld', 'vst', 'dma'): return 1
    return 0
def gap_len(items, after_mfma=True):
    t = 4 if after_mfma else 0; vfree = 8 if after_mfma else 0
    vend = -100; send = -100; ready = 16 if after_mfma else 0; nl = 0
    for i in items:
        k = i.k
        if k == 'lab': continue
        if k == 'nop': t += 4 * (int(i.t.split()[1]) + 1)
        elif k == 'wait': t += 4
        elif k == 'bar': t += 8
        elif k in ('salu', 'br', 'smem'): t += 4; send = t
        elif k in ('valu', 'perm', 'rfl', 'trans'):
            t = max(t, vfree)
            if i.t.startswith('v_pk_') or i.t.startswith('v_dot'): t = max(t, 24 if after_mfma else 0); ready = max(ready, t + 8)
            t += 8 if k == 'trans' else 4
            vend = t
        elif k in ('dsr', 'dsw'):
            t = max(t, vfree, vend + 8) + 4 + (4 if nl else 0); nl += 1
            if k == 'dsw': t += 4 * (len(i.rd) - 1)
        else:
            t = max(t, vfree, vend + 8, send + 4)
            if k == 'vst': ready = max(ready, t + 4 + 4 * max(1, len(i.rd) - 6))
            t += 8
    return max(t, ready)

def sim(seq):
    tot = 0; cur = []; first = True; n = 0
    for i in seq:
        if i.k == 'mfma':
            tot += gap_len(cur, not first); cur = []; first = False; n += 1
        else: cur.append(i)
    tot += gap_len(cur, not first)
    return tot, n

def schedule(backbone, forced, streams, cap=2, verbose=False, vmgap=3):
    n = len(backbone)
    pos = [0] * len(streams)
    st = []
    for s in streams:
        s = [list(x) for x in s]
        for i in range(len(s) - 2, -1, -1):
            s[i][2] = min(s[i][2], s[i + 1][2])
        for i in range(1, len(s)):
            s[i][1] = max(s[i][1], s[i - 1][1])
        soft = 1e9
        for i in range(len(s) - 1, -1, -1):
            w = {'trans': 1.0, 'valu': 0.5, 'dma': 1.0, 'vld': 1.0, 'vst': 1.0, 'dsr': 1.0, 'dsw': 1.0}.get(s[i][0].k, 0.34)
            soft = min(s[i][2] + 0.99, soft) - w
            s[i].append(soft)
        for x in s:
            assert x[1] <= x[2], (x[0].t, x[1], x[2])
        st.append(s)
    out = []
    over = 0
    lastvm = -100
    def arrange(fx, ch):
        best = None
        for order in (sorted(ch, key=lambda c: klass(c[0])), ch):
            ok = True
            for k in set(c[1] for c in ch):
                if [c[0] for c in order if c[1] == k] != [c[0] for c in ch if c[1] == k]: ok = False
            if not ok: continue
            L = gap_len(fx + [c[0] for c in order])
            if best is None or L < best[0]: best = (L, order)
        return best
    for g in range(n + 1):
        fx = list(forced.get(g, []))
        ch = []
        cur = gap_len(fx)
        while True:
            best = None
            heads = [(k, s[pos[k]]) for k, s in enumerate(st) if pos[k] < len(s) and s[pos[k]][1] <= g]
            havev = any(h[0].k == 'valu' for k, h in heads)
            empty = not any(klass(c[0]) for c in ch)
            for k, (ins, e, d, soft) in heads:
                must = d <= g or g == n
                L, order = arrange(fx, ch + [(ins, k)])
                fits = L <= cur
                if ins.k == 'vst' and not ch and gap_len(fx + [ins]) <= 28: fits = True
                if ins.k in ('vld', 'vst', 'dma') and g - lastvm < vmgap: fits = False
                if not (must or fits): continue
                if must: c = 0
                elif soft <= g + 1: c = 1
                elif not empty: c = 2
                elif ins.k in ('vld', 'vst', 'dma'): c = 2
                elif klass(ins) == 0: c = 3
                elif klass(ins) == 1 and havev: c = 4
                elif ins.k == 'trans': c = 5
                else: c = 6
                key = (c, soft, k)
                if best is None or key < best[0]: best = (key, k, L, order)
            if best is None: break
            _, k, cur, ch = best
            ch = list(ch)
            if st[k][pos[k]][0].k in ('vld', 'vst', 'dma'): lastvm = g
            pos[k] += 1
        out += fx + [c[0] for c in ch]
        if 0 < g < n and cur > 16:
            over += cur - 16
            if verbose > 1: print('   over at', g, cur, [i.t[:14] for i in fx + [c[0] for c in ch]])
        if g == n and verbose: print(f"  sched: {n} mfma, overflow cycles {over}, tail cycles {cur}")
        if g < n: out.append(backbone[g])
    for k, s in enumerate(st): assert pos[k] == len(s)
    return out

LG = ('dsr', 'dsw')
VM = ('vld', 'vst', 'dma')
def flat(path):
    o = []
    for seg in path: o += seg
    return o

def resolve_waits(paths):
    for path in paths:
        seq = flat(path)
        for idx, ins in enumerate(seq):
            if ins.k != 'wait': continue
            regs, tags = ins.need
            if regs or tags:
                cl = cv = 0
                fl = fv = False
                for j in range(idx - 1, -1, -1):
                    p = seq[j]
                    if p.k in LG:
                        if not fl and (p.wr & regs or (p.tag is not None and p.tag in tags)):
                            fl = True
                            n = min(cl, 15)
                            ins.n_lgkm = n if ins.n_lgkm is None else min(ins.n_lgkm, n)
                        cl += 1
                    elif p.k in VM:
                        if not fv and (p.wr & regs or (p.tag is not None and p.tag in tags)):
                            fv = True
                            n = min(cv, 63)
                            ins.n_vm = n if ins.n_vm is None else min(ins.n_vm, n)
                        cv += 1
                    if (fl or cl > 64) and (fv or cv > 200): break
    for path in paths:
        for ins in flat(path):
            if ins.k == 'wait':
                t = "s_waitcnt"
                if ins.n_vm is not None: t += f" vmcnt({ins.n_vm})"
                if ins.n_lgkm is not None: t += f" lgkmcnt({ins.n_lgkm})"
                if t == "s_waitcnt": t = "s_nop 0"
                ins.t = t

def verify_waits(paths, name=""):
    for path in paths:
        lq = []; vq = []; sm = set()
        for ins in flat(path):
            if ins.k == 'wait':
                if ins.n_lgkm is not None:
                    while len(lq) > ins.n_lgkm: lq.pop(0)
                    if ins.n_lgkm == 0: sm = set()
                if ins.n_vm is not None:
                    while len(vq) > ins.n_vm: vq.pop(0)
                continue
            touched = ins.rd | ins.wr
            for q in lq + vq:
                if q.wr & touched:
                    raise Exception(f"{name}: missing wait: {ins.t} touches result of pending {q.t}")
            if sm & touched: raise Exception(f"{name}: missing smem wait at {ins.t}")
            if ins.k in LG: lq.append(ins)
            elif ins.k in VM:
                vq.append(ins)
                assert len(vq) <= 63, f"{name}: >63 vm ops outstanding at {ins.t}"
            elif ins.k == 'smem': sm |= ins.wr

VALUK = ('valu', 'trans', 'perm', 'rfl')
def need_states(p, c):
    n = 0
    if p.k in VALUK:
        vw = {r for r in p.wr if r[0] in 'va' and r != 'vcc'}
        sw = {r for r in p.wr if r[0] == 's' and r != 'scc' or r == 'vcc'}
        if c.k == 'mfma' and vw & c.rd: n = max(n, 2)
        if c.k == 'perm' and vw & c.rd: n = max(n, 2)
        if c.k == 'rfl' and vw & c.rd: n = max(n, 1)
        if 'dpp' in c.t or 'row_' in c.t:
            if vw & c.rd: n = max(n, 2)
        if p.k == 'trans' and c.k in ('valu', 'perm', 'rfl') and vw & c.rd: n = max(n, 1)
        if sw & c.rd:
            if c.k in VALUK: n = max(n, 2)
            if c.k in VM: n = max(n, 5)
            if c.k == 'rfl': n = max(n, 4)
            if c.k in ('salu', 'br'): n = max(n, 1)
        if 'exec' in p.wr: n = max(n, 5)
        if p.t.startswith('v_dot') and vw & (c.rd | c.wr):
            ops = c.t.replace(',', ' ').split()
            same = ops[0] == p.t.split()[0] and not (vw & set(ops[2:4]))
            if not same: n = max(n, 3)
    if p.k == 'mfma':
        if c.k == 'mfma':
            if p.wr & c.AB: n = max(n, 8)
            cc = set(c.C)
            if p.wr & cc and p.wr != cc: n = max(n, 6)
        else:
            if p.wr & (c.rd | c.wr): n = max(n, 8)
            if c.k in VALUK and set(p.C) & c.wr: n = max(n, 3)
    if p.k == 'salu' and 'm0' in p.wr and c.k == 'dma': n = max(n, 1)
    if p.k == 'vst' and p.AB & c.wr: n = max(n, 2)
    if p.k == 'dsw' and p.rd & c.wr: n = max(n, 2)
    return n

def states_of(i):
    if i.k == 'lab': return 0
    if i.k == 'nop': return int(i.t.split()[1]) + 1
    return 1

def fix_hazards(paths, name="", verbose=True):
    total = 0
    changed = True
    while changed:
        changed = False
        for path in paths:
            hist = []
            for seg in path:
                j = 0
                while j < len(seg):
                    c = seg[j]
                    need = 0; d = 0
                    for p in reversed(hist[-14:]):
                        if d >= 9: break
                        r = need_states(p, c)
                        if r > d: need = max(need, r - d)
                        d += states_of(p)
                    if need > 0:
                        np_ = nop(need - 1)
                        seg.insert(j, np_); hist.append(np_); j += 1
                        total += need; changed = True
                        if verbose: print(f"  hazard nop {need} before {c.t}")
                    hist.append(c); j += 1
    return total

def verify_scc(paths, name=""):
    for path in paths:
        last = None
        for ins in flat(path):
            if 'scc' in ins.rd:
                ok = last is not None and (last.t.startswith('s_cmp') or last.t.startswith('s_bitcmp') or ins.t.startswith('s_addc') or ins.t.startswith('s_subb'))
                assert ok, f"{name}: scc consumer {ins.t} sees {last}"
            if 'scc' in ins.wr: last = ins

def finish(paths, name="", verbose=False):
    verify_scc(paths, name)
    t = fix_hazards(paths, name, verbose)
    resolve_waits(paths)
    verify_waits(paths, name)
    if t: print(f"  {name}: inserted {t} hazard wait states")
    for p in paths:
        c, n = sim(flat(p)); print(f"  {name}: path est {c} cycles, {n} mfma ({16*n})")

def text(seq):
    return "".join(i.t + "\n" for i in seq)

def verify_lds(path, name=""):
    content = {}
    reads = {}
    lq = []; vq = []; shared = {}
    def items(i):
        if not i.lds: return []
        if isinstance(i.lds[1], list): return list(zip(i.lds[1], i.lds[2]))
        return [(i.lds[1], i.lds[2])]
    def retire(q, rest):
        for slot, cid in items(q):
            if any(z.lds and z.lds[0] == q.lds[0] and slot in [x[0] for x in items(z)] for z in rest): continue
            if q.lds[0] == 'r':
                if len(q.lds) > 3: reads[slot] = 'done' if shared.get(slot) else 'released'
                else: reads[slot] = 'done'
            else: content[slot][1] = 'landed'
    for ins in flat(path):
        if ins.k == 'wait':
            if ins.n_lgkm is not None:
                while len(lq) > ins.n_lgkm: q = lq.pop(0); retire(q, lq)
            if ins.n_vm is not None:
                while len(vq) > ins.n_vm: q = vq.pop(0); retire(q, vq)
            continue
        if ins.k == 'bar':
            for s in content:
                if content[s][1] == 'landed': content[s][1] = 'ready'
            for s in reads:
                if reads[s] == 'done': reads[s] = 'released'; shared[s] = False
            continue
        for slot, cid in items(ins):
            if ins.lds[0] == 'r':
                ok = slot in content and content[slot][0] == cid and (content[slot][1] == 'ready' or (len(ins.lds) > 3 and ins.lds[3] is True and content[slot][1] == 'landed'))
                assert ok, f"{name}: read of slot {slot} wants {cid}, has {content.get(slot)} at {ins.t}"
                reads[slot] = 'issued'
                if len(ins.lds) <= 3: shared[slot] = True
            else:
                assert reads.get(slot, 'released') == 'released', f"{name}: write to slot {slot} ({cid}) while reads {reads[slot]}"
                assert not (slot in content and content[slot][1] == 'inflight' and content[slot][0] != cid), f"{name}: write to slot {slot} ({cid}) while {content[slot]} at {ins.t}"
                content[slot] = [cid, 'inflight']
        if ins.k in LG: lq.append(ins)
        elif ins.k in VM: vq.append(ins)

def srd(dst, ptr, nbytes):
    return [salu('s_mov_b32', dst[0], ptr[0]), salu('s_mov_b32', dst[1], ptr[1]),
            salu('s_mov_b32', dst[2], nbytes), salu('s_mov_b32', dst[3], 0x20000)]

KD = """.p2align 6
.amdhsa_kernel {name}
  .amdhsa_next_free_vgpr {nvgpr}
  .amdhsa_next_free_sgpr 96
  .amdhsa_accum_offset {accum}
  .amdhsa_group_segment_fixed_size 0
  .amdhsa_kernarg_size 104
  .amdhsa_user_sgpr_count 2
  .amdhsa_user_sgpr_kernarg_segment_ptr 1
  .amdhsa_system_sgpr_workgroup_id_x 1
.end_amdhsa_kernel
"""
def khead(name):
    return f".globl {name}\n.p2align 12\n.type {name},@function\n{name}:\n"
```

```python
from fw import *
import struct, math
def f2u(x): return struct.unpack('<I', struct.pack('<f', x))[0]

WS_Q, WS_K, WS_V, WS_CTX, WS_H, WS_G, WS_P = 0, 16 << 20, 32 << 20, 48 << 20, 64 << 20, 96 << 20, 100 << 20
GSTR = 128 * 1024
import os
STFL = os.environ.get("STFL", " sc0 sc1")
NOSTORE = os.environ.get("NOSTORE", "0") == "1"

class SubRound:
    def __init__(s, ks, slots, cids, parts, first, swap=False, bar=None, extra=()):
        s.ks = ks; s.slots = slots; s.cids = cids; s.parts = parts; s.first = first; s.swap = swap
        s.bar = bar
        s.extra = list(extra)
        s.start = s.end = None; s.bargap = None
        s.lastm = {}
        s.firstm = {}

RDL = int(os.environ.get("RDL", "5"))
def build_backbone(subs, act, TB, trfn):
    bb = []; forced = {}; rs = []; xr = []
    for r, s in enumerate(subs):
        s.start = len(bb)
        fr = s.fr
        nk = len(s.ks)
        for p, (cb, acc) in enumerate(s.parts):
            for tb in range(TB):
                s.firstm[(p, tb)] = len(bb)
                for i, ks in enumerate(s.ks):
                    C = 0 if (s.first and i == 0) else None
                    if s.swap: bb.append(mfma(acc[tb], act(ks, tb), fr[p * nk + i], C))
                    else: bb.append(mfma(acc[tb], fr[p * nk + i], act(ks, tb), C))
                s.lastm[(p, tb)] = len(bb) - 1
        s.end = len(bb)
    lastbar = 0
    for r, s in enumerate(subs):
        fr = s.fr
        nk = len(s.ks)
        reads = []
        hb = r + 1 < len(subs) and subs[r + 1].bar is not None
        for p, (cb, acc) in enumerate(s.parts):
            for i in range(nk):
                for h in range(2):
                    x = trfn(fr[p * nk + i][2 * h:2 * h + 2], cb, s.slots[i], h)
                    x.lds = ('r', s.slots[i], s.cids[i])
                    reads.append((x, p))
        if r == 0:
            ex = list(s.extra)
            forced.setdefault(0, []).extend([wait(tags=s.xtags)] + ex + [wait(tags=s.bar), bar()] + [x for x, p in reads])
            s.bargap = 0
        else:
            p = subs[r - 1]
            mine = set(q for f_ in fr[:nk * len(s.parts)] for q in f_.regs())
            e = 1
            for j in range(r - 1, -1, -1):
                t = subs[j]
                if mine & set(q for f_ in t.fr[:len(t.ks) * len(t.parts)] for q in f_.regs()):
                    e = t.end + 1; break
            if s.bar is not None:
                forced.setdefault(p.start + 1, []).extend([wait(tags=s.bar), bar()])
                s.bargap = lastbar = p.start + 1
            e = max(e, lastbar + 1)
            for x, part in reads:
                rs.append((x, e, max(e, s.firstm[(0 if hb else part, 0)] - RDL)))
            if s.extra:
                pp = subs[r - 2]
                xr.append((wait(tags=s.xtags), pp.start + 2, pp.start + 4))
                for x in s.extra: xr.append((x, pp.start + 2, s.start - RDL))
        for part in range(len(s.parts)):
            need = [fr[part * nk + i] for i in range(nk)]
            if hb:
                if part: continue
                need = fr[:nk * len(s.parts)]
            if part == 0: need += [act(ks, tb) for ks in s.ks for tb in range(TB)]
            if r == 0 and part == 0: forced[0].append(wait(regs=need))
            else: forced.setdefault(s.firstm[(part, 0)], []).insert(0, wait(regs=need))
    return bb, forced, rs, xr

import os
STAMPS = os.environ.get("STAMPS", "0") == "1"
def stamp_begin():
    if not STAMPS: return []
    return [raw("s_memrealtime s[80:81]", 'smem', wr=['s80', 's81']), raw("s_memtime s[82:83]", 'smem', wr=['s82', 's83'])]
def stamp_end(li, sWS, sWave, wpb=4):
    if not STAMPS: return [raw('s_endpgm', 'br')]
    return [wait(vm=0), raw("s_memtime s[84:85]", 'smem', wr=['s84', 's85']), raw("s_memrealtime s[86:87]", 'smem', wr=['s86', 's87']), wait(lgkm=0),
            salu('s_sub_u32', S(84), S(84), S(82)),
            nop(7), valu('v_mov_b32', V(0), S(80)), valu('v_mov_b32', V(1), S(86)), valu('v_mov_b32', V(2), S(84)), valu('v_mov_b32', V(3), S(88)),
            salu('s_mul_i32', S(85), S(2), wpb), salu('s_add_u32', S(85), S(85), sWave), salu('s_lshl_b32', S(85), S(85), 4),
            salu('s_add_u32', S(85), S(85), (200 << 20) + li * 65536), valu('v_mov_b32', V(4), 0),
            bstore(V(0, 4), V(4), sWS, S(85)), raw('s_endpgm', 'br')]

PROF = os.environ.get("PROF", "0") == "1"
def prof_points(forced, subs, picks, vreg, first_idx=1):
    if not PROF: return
    idx = first_idx
    for r in picks:
        if r + 1 >= len(subs): continue
        forced.setdefault(subs[r].start, []).append(raw("s_memtime s[90:91]", 'smem', wr=['s90', 's91']))
        forced.setdefault(subs[r + 1].start, []).extend([wait(lgkm=0), raw(f"v_writelane_b32 {vreg}, s90, {idx}", 'valu', rd=['s90'], wr=[str(vreg)])])
        idx += 1
def prof_now(vreg, idx):
    if not PROF: return []
    return [raw("s_memtime s[90:91]", 'smem', wr=['s90', 's91']), wait(lgkm=0), raw(f"v_writelane_b32 {vreg}, s90, {idx}", 'valu', rd=['s90'], wr=[str(vreg)])]
def prof_end(li, vreg, vtmp, sWS, sWave, wpb=4):
    if not PROF: return []
    return prof_now(vreg, 62) + [wait(vm=0)] + prof_now(vreg, 63) + [raw(f"v_writelane_b32 {vreg}, s82, 0", 'valu', rd=['s82'], wr=[str(vreg)]),
            salu('s_mul_i32', S(85), S(2), wpb), salu('s_add_u32', S(85), S(85), sWave), salu('s_lshl_b32', S(85), S(85), 8),
            salu('s_add_u32', S(85), S(85), (208 << 20) + li * (1 << 20)),
            raw(f"v_mbcnt_lo_u32_b32 {vtmp}, -1, 0", 'valu', wr=[str(vtmp)]), raw(f"v_mbcnt_hi_u32_b32 {vtmp}, -1, {vtmp}", 'valu', rd=[str(vtmp)], wr=[str(vtmp)]),
            valu('v_lshlrev_b32', vtmp, 2, vtmp), bstore(vreg, vtmp, sWS, S(85)), wait(vm=0)]

def prof_dyn(vreg, vtmp, vLane, sIdx, sreg=90, add=0):
    if not PROF: return []
    return [salu('s_add_u32', S(94), sIdx, add), valu('v_mov_b32', vtmp, S(sreg)), valu('v_cmp_eq_u32', 'vcc', S(94), vLane), valu('v_cndmask_b32', vreg, vreg, vtmp, 'vcc')]
def prof_t(sreg=90):
    if not PROF: return []
    return [raw(f"s_memtime s[{sreg}:{sreg+1}]", 'smem', wr=[f's{sreg}', f's{sreg+1}'])]

def prof_pair(items, vA, vB, vI, vT, vLane):
    if not PROF: return items
    return prof_t(90) + items + prof_t(92) + [wait(lgkm=0), valu('v_cmp_eq_u32', 'vcc', vI, vLane),
            valu('v_mov_b32', vT, S(90)), valu('v_cndmask_b32', vA, vA, vT, 'vcc'), valu('v_mov_b32', vT, S(92)), valu('v_cndmask_b32', vB, vB, vT, 'vcc'),
            valu('v_add_u32', vI, 1, vI)]

CPF = os.environ.get("CPF", "1") == "1"
def code_touch(l0, l1, vLane, sWave, vt, st, nlines_per_wave):
    if not CPF: return []
    n = nlines_per_wave
    return [raw(f"s_getpc_b64 {st[0:2]}", wr=st[0:2].regs()), lab(f"{l0}_pc"),
            salu('s_lshr_b32', st[2], S(2), 3), salu('s_lshl_b32', st[2], st[2], 2), salu('s_add_u32', st[2], st[2], sWave), salu('s_mul_i32', st[2], st[2], n),
            valu('v_min_u32', vt[0], n - 1, vLane), valu('v_add_u32', vt[0], st[2], vt[0]), valu('v_lshlrev_b32', vt[0], 7, vt[0]),
            raw(f"v_min_u32 {vt[0]}, {l1}-{l0}_pc-4, {vt[0]}", 'valu', rd=vt[0].regs(), wr=vt[0].regs()),
            valu('v_mov_b32', vt[1], st[1]),
            raw(f"v_add_co_u32 {vt[0]}, vcc, {st[0]}, {vt[0]}", 'valu', rd=vt[0].regs() + st[0].regs(), wr=vt[0].regs() + ['vcc']),
            raw(f"v_addc_co_u32 {vt[1]}, vcc, 0, {vt[1]}, vcc", 'valu', rd=vt[1].regs() + ['vcc'], wr=vt[1].regs() + ['vcc']),
            Ins(f"global_load_dword {vt[2]}, {vt[0:2]}, off", 'vld', vt[0:2].regs(), vt[2].regs())]

WARM = os.environ.get("WARM", "1") == "1"
def ins_sizes(seq, tail=""):
    import subprocess, tempfile
    src = '.amdgcn_target "amdgcn-amd-amdhsa--gfx950"\n.text\n' + MACROS + text(seq) + tail
    d = tempfile.mkdtemp()
    open(d + "/a.s", "w").write(src)
    subprocess.run(["clang", "-x", "assembler", "-target", "amdgcn-amd-amdhsa", "-mcpu=gfx950", "-c", d + "/a.s", "-o", d + "/a.o"], check=True)
    o = subprocess.run(["llvm-objdump", "-d", d + "/a.o"], capture_output=True, text=True).stdout
    sz = [4 * len(l.split("//")[1].split(":")[1].split("<")[0].split()) for l in o.split("\n") if "//" in l and re.search(r"// [0-9A-F]{12}:", l)]
    real = [x for x in seq if x.k != 'lab']
    assert len(sz) == len(real), (len(sz), len(real))
    return {id(x): n for x, n in zip(real, sz)}
def warm_layout(segs, rets, pfx, tail=""):
    seq = [x for _, _, s in segs for x in s]
    pat = [x for x in seq if '@' in x.t]
    old = {id(x): x.t for x in pat}
    for x in pat: x.t = "s_nop 0"
    sz = ins_sizes(seq, tail)
    out = []; a = 0; chains = {}; cnt = [0]
    def stub(tag):
        l = f"{pfx}_w{cnt[0]}"; cnt[0] += 1
        x = raw("?", 'br'); chains.setdefault(tag, []).append((l, x)); out.extend([lab(l), x])
    for tag, entry, s in segs:
        chains.setdefault(tag, [])
        if entry == 'align': out.append(Ins('.p2align 12', 'lab')); a = (a + 4095) // 4096 * 4096; continue
        want = entry and tag is not None and WARM
        page = None
        for i, x in enumerate(s):
            if x.k == 'lab':
                out.append(x); continue
            if want: stub(tag); a += 4; want = False; last = a
            if page is not None:
                prev = next(y for y in reversed(out) if y.k != 'lab')
                if (prev.k == 'mfma' or a + sz[id(x)] > page + 56) and not prev.t.startswith('s_getpc'): stub(tag); a += 4; page = None
            out.append(x)
            b = a + sz[id(x)]
            if tag is not None and WARM and b // 4096 != a // 4096 and i + 4 < len(s): page = b // 4096 * 4096
            a = b
    heads = {}
    for tag, ch in chains.items():
        if tag is None: continue
        r = rets[tag]
        parts = [(99, r)] if isinstance(r, str) else r
        for j, (n, ret) in enumerate(parts):
            c, ch = ch[:n], ch[n:]
            heads[f"@{tag}.{j}" if j else f"@{tag}"] = (c, ret)
    def res(l):
        while l.startswith('@'):
            c, ret = heads[l]
            if c: return c[0][0]
            l = ret
        return l
    for c, ret in heads.values():
        for k, (l, x) in enumerate(c): x.t = f"s_cbranch_execz {c[k + 1][0] if k + 1 < len(c) else res(ret)}"
    for x in pat:
        op, t = old[id(x)].split(); x.t = f"{op} {res(t)}"
    print("  warm chains:", {k: len(c) for k, (c, _) in heads.items()}, "bytes", a)
    return out
```

```python
from gemm import *

sACT, sWA, sW1, sWS = S(4, 4), S(8, 4), S(12, 4), S(16, 4)
sWave, sCS, sTT = S(24), S(25), S(26)
sAO = [S(27 + i) for i in range(4)]
sM, sD, sT = S(31), S(32), S(33)
sColA, sColH, sStA, sStH = S(34), S(35), S(36), S(37)
sQC, sNL = S(38), S(39)
sSt = S(40)
sTc = S(43)
sSz = [S(68 + i) for i in range(4)]
sP = S(44, 24)
vTR = [V(1 + i) for i in range(4)]
vDA = [V(5 + i) for i in range(4)]
vDH = [V(9 + i) for i in range(4)]
vST, vX = V(13), V(14)
vXD = [V(252), V(253)]
vXR = [V(254), V(255)]
vLane, vT0 = V(15), V(0)
ACTX = 16
ACC = 48
WB = 176
TMP = 212

def act(ks, tb):
    f = ks * 4 + tb
    return A(4 * f, 4) if f < 64 else V(ACTX + 4 * (f - 64), 4)

def setup_lanes(RING, strideA, strideH, actstride):
    o = []
    t0, t1, t2 = V(TMP), V(TMP + 1), V(TMP + 2)
    PS = 40 * 1024
    o += [valu('v_lshrrev_b32', t0, 4, vLane),
          salu('s_mov_b32', sT, PS),
          valu('v_mul_lo_u32', vTR[0], t0, sT),
          valu('v_and_b32', t1, 1, t0), valu('v_lshlrev_b32', t1, 6, t1),
          valu('v_add_u32', vTR[0], vTR[0], t1),
          valu('v_bfe_u32', t1, vLane, 2, 2),
          valu('v_lshlrev_b32', t2, 7, t1), valu('v_add_u32', vTR[0], vTR[0], t2),
          valu('v_lshrrev_b32', t1, 1, t1), valu('v_lshlrev_b32', t1, 5, t1), valu('v_add_u32', vTR[0], vTR[0], t1),
          valu('v_and_b32', t1, 3, vLane), valu('v_lshlrev_b32', t1, 3, t1), valu('v_add_u32', vTR[0], vTR[0], t1)]
    for cb in range(1, 4): o.append(valu('v_xor_b32', vTR[cb], cb * 32, vTR[0]))
    o += [valu('v_lshrrev_b32', t0, 3, vLane),
          valu('v_and_b32', t1, 2, t0),
          salu('s_and_b32', sT, sWave, 1), salu('s_lshl_b32', sT, sT, 2),
          valu('v_or_b32', t1, sT, t1),
          valu('v_and_b32', t2, 7, vLane), valu('v_xor_b32', t1, t1, t2), valu('v_lshlrev_b32', t1, 4, t1),
          salu('s_lshl_b32', sT, sWave, 3), valu('v_add_u32', t0, sT, t0)]
    for vD, st in ((vDA, strideA), (vDH, strideH)):
        if st is None: continue
        o += [salu('s_mov_b32', sT, st), valu('v_mul_lo_u32', vD[0], t0, sT), valu('v_add_u32', vD[0], vD[0], t1)]
        for i in range(1, 4): o.append(valu('v_add_u32', vD[i], i * (32 * st - 1024), vD[0]))
    o += [valu('v_lshlrev_b32', vST, 4, vLane),
          valu('v_and_b32', t0, 15, vLane), salu('s_mov_b32', sT, actstride), valu('v_mul_lo_u32', vX, t0, sT),
          valu('v_lshrrev_b32', t0, 4, vLane), valu('v_lshlrev_b32', t0, 4, t0), valu('v_add_u32', vX, vX, t0),
          salu('s_mul_i32', sM, sWave, PS)]
    o += [valu('v_lshrrev_b32', t0, 3, vLane), valu('v_mul_lo_u32', vXD[0], t0, sT),
          valu('v_lshrrev_b32', t1, 1, t0), valu('v_and_b32', t2, 7, vLane), valu('v_xor_b32', t1, t1, t2), valu('v_lshlrev_b32', t1, 4, t1),
          valu('v_xor_b32', t2, 64, t1), valu('v_add_u32', vXD[1], vXD[0], t2), valu('v_add_u32', vXD[1], 8 * actstride - 1024, vXD[1]),
          valu('v_add_u32', vXD[0], vXD[0], t1)]
    o += [valu('v_and_b32', t0, 15, vLane), valu('v_lshrrev_b32', t1, 1, t0), valu('v_lshrrev_b32', t2, 4, vLane), valu('v_xor_b32', t1, t1, t2),
          valu('v_lshlrev_b32', t1, 4, t1), valu('v_lshlrev_b32', t0, 7, t0), valu('v_add3_u32', vXR[0], t0, t1, sM), valu('v_xor_b32', vXR[1], 64, vXR[0])]
    o += [salu('s_lshl_b32', sT, sTT, 2), salu('s_add_u32', sT, sT, sWave), salu('s_mul_i32', sAO[0], sT, 64 * actstride)]
    for i in range(1, 4): o.append(salu('s_add_u32', sAO[i], sAO[0], i * 16 * actstride))
    return o

class Blk:
    def __init__(s, typ, idx, second=None):
        s.typ = typ; s.idx = idx
        if second is None: second = typ == 'H'
        s.st = 9216 if typ == 'H' else 8192
        s.srd, s.col, s.sto = (sW1, sColH, sStH) if second else (sWA, sColA, sStA)
VNEW = os.environ.get('VNEW', '1') == '1'
DSTEP = int(os.environ.get("DSTEP", "4"))
FSTEP = int(os.environ.get("FSTEP", "4"))

def alloc_x(NU, PRE, npairs):
    import itertools
    W = lambda u: {u, NU + u} if 0 <= u < NU else set()
    sol = []
    def rec(u):
        if u == NU: return True
        forb = set()
        for v in range(max(0, u - PRE), u + PRE): forb |= W(v)
        for v in range(max(0, u - PRE + 1), u): forb |= set(sol[v])
        free = [p for p in range(npairs) if p not in forb]
        free.sort(key=lambda p: -p)
        for c in itertools.combinations(free, 4):
            sol.append(c)
            if rec(u + 1): return True
            sol.pop()
        return False
    assert rec(0)
    return sol

PRE = int(os.environ.get("PRE", "2"))
TOFF = int(os.environ.get('TOFF', '0'))
def l1_path(name, blocks, NK, CH, tplan=(), verbose=1):
    NG = NK // CH
    NU = NK // 2
    wbuf1 = [[V(WB + 4 * (4 * b + i), 4) for i in range(4)] for b in range(2)]
    if CH == 3: wbuf2 = [[V(WB + 4 * (3 * b + i), 4) for i in range(3)] for b in range(3)]
    else: wbuf2 = wbuf1 + [[V(ACTX + 4 * i, 4) for i in range(4)]]
    def accset(s): return [[V(ACC + 32 * s + 16 * c + 4 * tb, 4) for tb in range(4)] for c in range(2)]
    def trfn(dst, cb, slot, h): return tr(dst, vTR[cb], slot * 1024 + h * 512)
    def dmagrp(b, k0, n):
        B = blocks[b]
        vD = vDH if B.st == 9216 else vDA
        o = [salu('s_add_u32', 'm0', sM, ((b & 1) * NK + k0) * 1024),
             salu('s_add_u32', sD, B.col, B.idx * 128 + k0 * 32 * B.st)]
        for i in range(n):
            x = dma(vD[i], B.srd, sD, i * 1024, tag=('w', b, k0 + i))
            x.lds = ('w', (b & 1) * NK + k0 + i, (b, k0 + i))
            o.append(x)
        return o
    xa = alloc_x(NU, PRE, 20)
    def xdma(u):
        o = []
        for tb in range(4):
            p = xa[u][tb]
            so, io = sAO[tb], u * 128
            if p == 0:
                o.append(salu('s_add_u32', sD, sAO[tb], u * 128)); so, io = sD, 0
            o.append(salu('s_add_u32', 'm0', sM, p * 2048 - io))
            for i in range(2):
                x = dma(vXD[i], sACT, so, io + i * 1024, tag=('x', u))
                x.lds = ('w', 2 * p + i, ('x', u, tb, i)); o.append(x)
        return o
    def xreads(u):
        o = []
        for kl in range(2):
            for tb in range(4):
                p = xa[u][tb]
                x = dsr128(act(2 * u + kl, tb), vXR[kl], p * 2048)
                x.lds = ('r', [2 * p, 2 * p + 1], [('x', u, tb, 0), ('x', u, tb, 1)], True); o.append(x)
        return o
    nb = len(blocks)
    subs = []
    lastsub = {}; firstsub = {}
    for u in range(NU):
        for b in range(2):
            for half in range(2):
                ks = [2 * u, 2 * u + 1]
                f = (b == 0 and half == 0)
                ac = accset(b * 2 + half)
                s = SubRound(ks, [b * NK + k for k in ks], [(b, k) for k in ks], [(half * 2, ac[0]), (half * 2 + 1, ac[1])], u == 0,
                             swap=blocks[b].typ == 'V', bar=[('w', bb_, k) for bb_ in range(2) for k in ks] if f else None,
                             extra=xreads(u) if f else ())
                s.xtags = [('x', u)]; s.fr = wbuf1[len(subs) % 2]
                subs.append(s); s.key = (b, half, 0, u)
                for c in range(2): lastsub[(b, half, c)] = (s, c)
    def free_at(slot):
        t = (slot % NK) // 2 + 1
        for u in range(NU):
            if slot // 2 in xa[u]: t = max(t, u)
        return t
    late = [k for k in range(NK) if free_at(k) >= NU - 1]
    firstlate = min(late) // CH
    if verbose > 1: print(xa, [free_at(k) for k in range(2 * NK)], firstlate)
    for b in range(2, nb):
        for half in range(2):
            for n in range(NG):
                for c in range(2):
                    ks = list(range(n * CH, n * CH + CH))
                    barr = None
                    if half == 0 and c == 0:
                        if b == 2:
                            if n == 0: barr = [('w', b, k) for k in range(firstlate * CH)]
                            if n == firstlate: barr = [('w', b, k) for k in range(NK)]
                        elif n == 0: barr = [('w', b, k) for k in range(NK)]
                    s = SubRound(ks, [(b & 1) * NK + k for k in ks], [(b, k) for k in ks], [(half * 2 + c, accset((b & 1) * 2 + half)[c])], n == 0,
                                 swap=blocks[b].typ == 'V', bar=barr)
                    s.fr = wbuf2[(len(subs) - 4 * NU) % 3]
                    subs.append(s); s.key = (b, half, c, n)
                    lastsub[(b, half, c)] = (s, 0)
                    if n == 0: firstsub[(b, half, c)] = (s, 0)
    bb, forced, rs, xr = build_backbone(subs, act, 4, trfn)
    sub = {s.key: s for s in subs}
    prof_points(forced, subs, [r for r, s in enumerate(subs) if (s.key[0] < 2 and s.key[:3] == (0, 0, 0)) or (s.key[0] >= 2 and s.key[2:] == (0, 0))], V(0), 2)
    N = len(bb)
    pro = []
    for u in range(PRE): pro += xdma(u) + dmagrp(0, 2 * u, 2) + dmagrp(1, 2 * u, 2)
    ms = []
    ts = []
    TOUCH = os.environ.get("TOUCH", "1") == "1"
    if nb > 2 and TOUCH:
        tv = [V(TMP + 16 + i) for i in range(16)]
        RW = 2 * NK // 2 // 1
        RW = NK
        sh = 2 if NK == 16 else 1
        t0 = tv[15]
        pro += [valu('v_lshrrev_b32', t0, sh, vLane), valu('v_min_u32', t0, RW - 1, t0),
                salu('s_lshl_b32', sT, sTT, 2), salu('s_add_u32', sT, sT, sWave), salu('s_mul_i32', sT, sT, RW), valu('v_add_u32', t0, sT, t0),
                valu('v_lshlrev_b32', tv[0], 13, t0), salu('s_movk_i32', sT, 9216), valu('v_mul_u32_u24', tv[1], sT, t0),
                valu('v_and_b32', t0, 1, vLane), valu('v_lshlrev_b32', t0, 7, t0),
                valu('v_add_u32', tv[2], tv[0], t0), valu('v_add_u32', tv[3], tv[1], t0),
                valu('v_and_b32', t0, 3, vLane), valu('v_min_u32', t0, 2, t0), valu('v_lshlrev_b32', t0, 7, t0), valu('v_add_u32', tv[4], tv[0], t0)]
        nd = [5]
        def touch(g, bs):
            B = blocks[bs[0]]
            assert all(blocks[x].typ == B.typ and blocks[x].idx == B.idx + i for i, x in enumerate(bs))
            va = tv[4] if len(bs) == 3 else tv[(2 if len(bs) == 2 else 0) + (B.st == 9216)]
            ts.append((bload(tv[nd[0]], va, B.srd, B.col, B.idx * 128), g, g + 8)); nd[0] += 1
        for when, bs in tplan:
            if when[0] == 'u': g = sub[(0, 0, 0, when[1])].start + 56
            else: g = sub[(when[1], when[2], 0, 0)].start + TOFF
            touch(g, bs)
    def spread(items, g0, step):
        g = g0
        for x in items:
            ms.append((x, g, g + 6))
            if x.k in VM: g += step
        return g
    pend = []
    if nb > 2: pend += [(2, u) for u in range(NU)]
    if nb > 3: pend += [(3, u) for u in range(NU)]
    for u in range(NU):
        g = sub[(0, 0, 0, u)].start + 1
        if u + PRE < NU:
            spread(xdma(u + PRE) + dmagrp(0, 2 * (u + PRE), 2) + dmagrp(1, 2 * (u + PRE), 2), g, FSTEP)
        else:
            cnt = 0
            for (b, m) in list(pend):
                if free_at((b & 1) * NK + 2 * m) <= u and cnt < 5:
                    g = spread(dmagrp(b, 2 * m, 2), g, FSTEP); pend.remove((b, m)); cnt += 1
    if nb > 2:
        g = sub[(2, 0, 0, 0)].bargap + 1
        for (b, m) in pend: g = spread(dmagrp(b, 2 * m, 2), g, 6)
    for b in range(3, nb - 1):
        g = sub[(b, 0, 0, 0)].bargap + 1
        k = 0
        while k < NK:
            n = min(4, NK - k)
            g = spread(dmagrp(b + 1, k, n), g, DSTEP); k += n
    NS = 4
    ess = [[] for _ in range(NS)]
    LAG = 8
    for b in range(nb):
        B = blocks[b]
        for half in range(2):
            ac = accset((b & 1) * 2 + half)
            last = [lastsub[(b, half, c)] for c in range(2)]
            nxt = [firstsub.get((b + 2, half, c)) for c in range(2)]
            H = B.typ == 'H'
            for j in range(4):
                z = j
                if B.typ == 'V': tiles = [(j >> 1, (j & 1) * 2), (j >> 1, (j & 1) * 2 + 1)]
                else: tiles = [(0, j), (1, j)]
                d = min(nxt[c][0].firstm[(0, tb)] for c, tb in tiles) - 1 if nxt[0] else N
                out = ac[tiles[0][0]][tiles[0][1]]
                for q, (c, tb) in enumerate(tiles):
                    e = min(last[c][0].lastm[(last[c][1], tb)] + 1 + LAG, N)
                    items = []
                    if q == 0: items.append(salu('s_add_u32', sSz[z], B.sto, (B.idx * 2 + half) * GSTR))
                    src = ac[c][tb]
                    if B.typ == 'K':
                        items += [valu('v_mul_f32', src[i], sQC, src[i]) for i in range(4)]
                    elif H:
                        t = V(TMP + 4 * z, 4)
                        items += [valu('v_mul_f32', t[i], sNL, src[i]) for i in range(4)]
                        items += [valu('v_exp_f32', t[i], t[i]) for i in range(4)]
                        items += [valu('v_add_f32', t[i], 1.0, t[i]) for i in range(4)]
                        items += [valu('v_rcp_f32', t[i], t[i]) for i in range(4)]
                        items += [valu('v_mul_f32', src[i], t[i], src[i]) for i in range(4)]
                    items += [valu('v_cvt_pk_bf16_f32', out[2 * q], src[0], src[1]), valu('v_cvt_pk_bf16_f32', out[2 * q + 1], src[2], src[3])]
                    if q == 1 and not NOSTORE: items.append(bstore(out, vST, sWS, sSz[z], ((j & 1) * 2 + (j >> 1) if (B.typ == 'V' and VNEW) else j) * 1024, fl=STFL))
                    for x in items: ess[z].append((x, e, d))
    if verbose: print(name)
    body = schedule(bb, forced, [rs, xr, ms, ts] + ess, verbose=verbose)
    return pro + prof_now(V(0), 1) + body

def gate_code():
    o = []
    WL, WH, XR = 16, 52, 88
    t = V(236, 12); vG, vO = V(248), V(249); ones = V(250); acc = [V(232 + i) for i in range(4)]
    o += [valu('v_and_b32', vG, 7, vLane), valu('v_lshlrev_b32', vG, 4, vG)]
    for c in range(9): o.append(bload(V(WH + 4 * c, 4), vG, sWA, 0, c * 128))
    o += [valu('v_lshrrev_b32', vO, 3, vLane), salu('s_movk_i32', sT, 1152), valu('v_mad_u32_u24', vG, vO, sT, vG), valu('v_lshlrev_b32', vO, 2, vO),
          salu('s_lshl_b32', sT, sTT, 2), salu('s_add_u32', sT, sT, sWave), salu('s_lshl_b32', sSt, sT, 8), salu('s_add_u32', sSt, sSt, WS_G),
          salu('s_mul_i32', sD, sT, 64 * 1152), valu('v_mov_b32', ones, 0x3f803f80)]
    def loads(grp):
        r = []
        for c in range(9): r.append(bload(V(XR + 36 * (grp % 4) + 4 * c, 4), vG, sACT, sD, c * 128))
        return r + [salu('s_add_u32', sD, sD, 8 * 1152)]
    for grp in range(4): o += loads(grp)
    o.append(wait(regs=[V(WH, 36)]))
    for i in range(36):
        o += [valu('v_and_b32', V(WL + i), 0xffff, V(WH + i)), valu('v_and_b32', V(WH + i), 0xffff0000, V(WH + i))]
    for grp in range(8):
        X = XR + 36 * (grp % 4)
        a = acc[grp % 2]; a2 = acc[2]
        o.append(wait(regs=[V(X, 36)]))
        o.append(valu('v_mov_b32', a, 0))
        for i0 in range(0, 36, 4):
            for i in range(4): o += [valu('v_dot2_f32_bf16', t[2 * i], V(X + i0 + i), V(WL + i0 + i), 0), valu('v_dot2_f32_bf16', t[2 * i + 1], V(X + i0 + i), V(WH + i0 + i), 0)]
            for i in range(4): o.append(valu('v_cvt_pk_bf16_f32', t[8 + i], t[2 * i], t[2 * i + 1]))
            for i in range(4): o.append(valu('v_dot2_f32_bf16', a, t[8 + i], ones, a))
        if grp < 4: o += loads(grp + 4)
        for m in (" quad_perm:[1,0,3,2]", " quad_perm:[2,3,0,1]", " row_half_mirror"):
            o.append(valu('v_add_f32_dpp', a, a, a, mods=m + " row_mask:0xf bank_mask:0xf"))
        o += [valu('v_cvt_pk_bf16_f32', a, a, a), valu('v_and_b32', a, 0xffff0000, a),
              valu('v_mul_f32', a, sNL, a), valu('v_exp_f32', a, a), valu('v_add_f32', a, 1.0, a), valu('v_rcp_f32', a, a),
              valu('v_cvt_pk_bf16_f32', a, a, a), valu('v_and_b32', a, 0xffff0000, a),
              valu('v_sub_f32', a2, 1.0, a),
              valu('v_cvt_pk_bf16_f32', a2, a2, a2), valu('v_and_b32', a2, 0xffff0000, a2),
              bstore(a, vO, sWS, sSt, grp * 32, fl=STFL), salu('s_add_u32', sT, sSt, 8192), bstore(a2, vO, sWS, sT, grp * 32, fl=STFL)]
    return o

def gen_l1():
    P = lambda i: sP[2 * i:2 * i + 2]
    head = [salu('s_cmp_ge_u32', S(2), 256), br('s_cbranch_scc1', 'L1_exit')] + stamp_begin() + [
            sload(sP[0:8], S(0, 2), 0), sload(sP[8:16], S(0, 2), 32), sload(sP[16:20], S(0, 2), 64), sload(sP[20:22], S(0, 2), 96),
            valu('v_lshrrev_b32', V(TMP), 6, V(0)), valu('v_and_b32', vLane, 63, V(0)),
            valu('v_readfirstlane_b32', sWave, V(TMP))] + code_touch('L1', 'L1_end', vLane, sWave, V(248, 3), S(72, 3), 12) + [
            salu('s_and_b32', sCS, S(2), 7), salu('s_lshl_b32', sCS, sCS, 2), salu('s_bfe_u32', sT, S(2), 3 | (2 << 16)),
            salu('s_add_u32', sCS, sCS, sT), salu('s_lshr_b32', sTT, S(2), 5),
            salu('s_mov_b32', sQC, f2u(math.log2(math.e) / math.sqrt(128))), salu('s_mov_b32', sNL, f2u(-math.log2(math.e))),
            wait(lgkm=0)]
    head += srd(sWS, P(10), 256 << 20) + srd(sW1, P(7), 576 * 4608 * 2)
    head += [salu('s_lshl_b32', sT, sTT, 2), salu('s_add_u32', sT, sT, sWave), salu('s_lshl_b32', sSt, sT, 12),
             salu('s_cmp_lt_u32', sCS, 17), br('s_cbranch_scc1', 'L1_x'),
             salu('s_cmp_lt_u32', sCS, 24), br('s_cbranch_scc1', 'L1_k'),
             salu('s_cmp_lt_u32', sCS, 31), br('s_cbranch_scc1', 'L1_v')]
    def cpre(lbl, wptr, ws, b0reg_code):
        o = [lab(lbl)] if lbl else []
        o += srd(sACT, P(1), 2048 * 512 * 2) + srd(sWA, wptr, 512 * 4096 * 2)
        o += b0reg_code
        o += [salu('s_lshl_b32', sColA, sT, 7), salu('s_mul_i32', sStA, sT, 2 * GSTR), salu('s_add_u32', sStA, sStA, ws),
              salu('s_lshl_b32', sT, sTT, 2), salu('s_add_u32', sT, sT, sWave), salu('s_lshl_b32', sT, sT, 12),
              salu('s_add_u32', sStA, sStA, sT)]
        o += setup_lanes(32, 8192, None, 1024)
        return o
    end = lambda: prof_end(0, V(0), V(1), sWS, sWave) + stamp_end(0, sWS, sWave)
    m1 = cpre(None, P(3), WS_K, [salu('s_mov_b32', sT, 63)]) + srd(sW1, P(4), 512 * 4096 * 2) + \
        [salu('s_mov_b32', sColH, sColA), salu('s_add_u32', sStH, sStA, WS_V - WS_K)] + \
        l1_path('misc', [Blk('K', 0), Blk('V', 0, True)], 16, 4)
    zf = [valu('v_mov_b32', V(16 + i), 0) for i in range(4)] + [salu('s_lshr_b32', sT, sSt, 2), salu('s_add_u32', sT, sT, 97 << 20), bstore(V(16, 4), vST, sWS, sT, fl=STFL)]
    m3 = zf + [wait(vm=0)] + srd(sACT, P(0), 2048 * 576 * 2) + srd(sWA, P(9), 576 * 2) + gate_code()
    m4 = end() + [lab('L1_exit'), raw('s_endpgm', 'br')]
    KVP = [(('u', 2), [2, 3]), (('b', 2, 1), [4, 5]), (('b', 4, 1), [6, 7, 8])]
    kp = cpre('L1_k', P(3), WS_K, [salu('s_sub_u32', sT, sCS, 17), salu('s_mul_i32', sT, sT, 9)]) + \
        l1_path('K', [Blk('K', i) for i in range(9)], 16, 4, KVP) + end()
    vp = cpre('L1_v', P(4), WS_V, [salu('s_sub_u32', sT, sCS, 24), salu('s_mul_i32', sT, sT, 9)]) + \
        l1_path('V', [Blk('V', i) for i in range(9)], 16, 4, KVP) + end()
    xp = [lab('L1_x')] + srd(sACT, P(0), 2048 * 576 * 2) + srd(sWA, P(2), 576 * 4096 * 2) + setup_lanes(36, 8192, 9216, 1152)
    sA, sB = S(41), S(42)
    xp += [salu('s_lshl_b32', sA, sCS, 2), salu('s_mul_i32', sT, sCS, 3), salu('s_add_u32', sT, sT, 13), salu('s_min_u32', sA, sA, sT),
           salu('s_lshl_b32', sB, sCS, 2), salu('s_mul_i32', sT, sCS, 5), salu('s_sub_u32', sT, sT, 13), salu('s_max_i32', sB, sB, sT),
           salu('s_lshl_b32', sColA, sA, 7), salu('s_lshl_b32', sColH, sB, 7),
           salu('s_mul_i32', sStA, sA, 2 * GSTR), salu('s_add_u32', sStA, sStA, sSt), salu('s_add_u32', sStA, sStA, WS_Q),
           salu('s_mul_i32', sStH, sB, 2 * GSTR), salu('s_add_u32', sStH, sStH, sSt), salu('s_add_u32', sStH, sStH, WS_H),
           salu('s_cmp_lt_u32', sCS, 13), br('s_cbranch_scc0', 'L1_xb')]
    Q = lambda i: Blk('Q', i); Hh = lambda i: Blk('H', i)
    xa = l1_path('xA', [Q(0), Hh(0), Hh(1), Q(1), Hh(2), Hh(3), Q(2), Q(3)], 18, 3, [(('u', 2), [2]), (('u', 4), [3]), (('b', 2, 1), [4, 5]), (('b', 4, 1), [6, 7])]) + end()
    xb = [lab('L1_xb')] + l1_path('xB', [Q(0), Hh(0), Hh(1), Hh(2), Q(1), Hh(3), Hh(4), Q(2)], 18, 3, [(('u', 2), [2, 3]), (('b', 2, 1), [4]), (('b', 3, 1), [5, 6]), (('b', 5, 1), [7])]) + end()
    paths = [[head, m1, m3, m4], [head, kp], [head, vp], [head, xp, xa], [head, xp, xb]]
    finish(paths, 'L1')
    for p in paths: verify_lds(p, 'L1')
    return text(head + m1 + m3 + m4 + kp + vp + xp + xa + xb) + 'L1_end:\n'

if __name__ == '__main__':
    t = gen_l1()
    print(len(t), t.count('\n'))
```

```python
from gemm import *

PL = 40960
KS, VS, SPARE = [0, 8], [16, 32], 24
WS_F = 97 << 20
OOB = 0x10000000
SC1 = " sc1"
AFL = os.environ.get("AFL", " sc1")
sW2, sWo, sOut, sWS = S(4, 4), S(8, 4), S(12, 4), S(16, 4)
sWave, sH, sPp, sR = S(24), S(25), S(26), S(27)
sKb, sVb, sKn, sKrun, sVrun, sKend, sVend = S(28), S(29), [S(30), S(31)], S(32), S(33), S(34), S(35)
sD, sTmp, sM, sRH, sKH = S(36), S(37), S(38), S(39), S(40)
sQo = [[S(41 + 4 * it + q) for q in range(4)] for it in range(2)]
sBad, sSafe, sItem, sKd, sVd, sVn, sD2 = S(49), S(50), S(51), S(52), S(53), S(54), S(55)
sPO = [S(56), S(57)]
sAH, sAC, sWH, sSH, sWA, sSA = [S(58 + i) for i in range(6)]
sSt, sSt8, sGa, sG8, sOa, sO8, sFB, sFR, sGC = [S(64 + i) for i in range(9)]
sE = S(73)
sP = S(74, 6)
sPF = [sWo, sW2]
sSpin = S(88); SPINMAX = 1 << 18
vT1, vL16, vL16b = V(0), V(1), V(2)
vKV = [[V(3 + 3 * c + w) for w in range(3)] for c in range(2)]
vMW, vMR = V(9), V(10)
vG = [[V(11 + 2 * it + q) for q in range(2)] for it in range(2)]
vLane = V(15)
SB, PB, OK_, CI, CD = 16, 80, 144, 216, 232
vD = [V(248 + i) for i in range(4)]; vS, vL16c = V(252), V(253)
vPFa, vPFd = V(254), [V(255), V(212)]
vFl = V(213); vFa = V(214); vT0 = V(215)
PK = os.environ.get('PK', '')
PP = lambda items, k='': prof_pair(items, V(208), V(209), V(210), V(211), vLane) if (not PK or k in PK.split(',')) else items
def St(kb, q): return V(SB + 4 * (kb * 4 + q), 4)
def Pf(e, c, q): return V(PB + 32 * e + 4 * (c * 4 + q), 4)
def O(db, q): return V(OK_ + 4 * (db * 2 + q), 4) if q < 2 else A(64 + 4 * (db * 2 + q - 2), 4)
def Lq(q): return A(128 + 4 * q, 4)
def Qf(ks, q): return A(4 * (q * 4 + ks), 4)
ONES = A(144, 4)
def FB(i, j): return A(148 + 16 * i + 4 * j, 4)
STASH = A(252, 4)
def Ci(q): return V(CI + 4 * q, 4)
def Cd(q, b): return V(CD + 8 * (q // 3) + 4 * b, 4)

PAIRS = {0: [[0, 1, 2, 3], [3]], 1: [[0, 1, 3], [0, 1]], None: [[0, 1, 2, 3], [0, 1, 2, 3]]}
BND = {0: {(0, 0), (1, 3)}, 1: {(0, 3), (1, 0)}, None: set()}
TX, TA = int(os.environ.get("TX", 11)), int(os.environ.get("TA", 15))
LAG = 4
DKB = int(os.environ.get('DKB', 2))
STS = int(os.environ.get('STS', 14)); CTXU = int(os.environ.get('CTXU', 2))
WSP = [int(c) for c in os.environ.get('WSP', '23')]
NXA = int(os.environ.get('NXA', 6))
RETOUCH = [int(c) for c in os.environ.get('RETOUCH', '1')]
DP = 6
ALLT = [(kb, q) for kb in range(4) for q in range(4)]
BIG = 1 << 20

def kvread(dst, c, plane, slot, region, cid):
    a = plane * PL + slot * 1024
    x = dsr128(dst, vKV[c][a >> 16], a & 65535); x.lds = ('r', list(range(region, region + 8)), [cid] * 8)
    return x
def dmahalf(kind, buf, half, soff):
    base = (KS if kind == 'K' else VS)[buf] + half * 4
    o = [salu('s_add_u32', 'm0', sM, base * 1024)]
    for i in range(4):
        x = dma(vL16b if half else vL16, sWS, soff, i * 1024, tag=(kind, buf)); x.lds = ('w', base + i, kind); o.append(x)
    return o
def dmafull(kind, buf, soff): return dmahalf(kind, buf, 0, soff) + dmahalf(kind, buf, 1, soff)
def fbw(*i, tags=()): return wait(regs=[FB(a, b) for a in i for b in range(4)], tags=tags)
def adv(run, end, base): return [salu('s_add_u32', run, run, 8192), salu('s_cmp_eq_u32', run, end), salu('s_cselect_b32', run, base, run)]
def kadv(): return adv(sKrun, sKend, sKb)
def vadv(): return adv(sVrun, sVend, sVb)
def ksel(par, thresh): return [salu('s_cmp_ge_u32', sR, thresh), salu('s_cselect_b32', sD, sKrun, sKn[par])] + kadv()
def qloads(it):
    o = []
    for q in range(4):
        for ks in range(4):
            o += [salu('s_add_u32', sD2, sQo[it][q], ks * GSTR), bload(Qf(ks, q), vL16, sWS, sD2, 0)]
    return o
QALL = [Qf(ks, q) for ks in range(4) for q in range(4)]

def fineprof(name, out):
    for spec in os.environ.get('FP', '').split(','):
        if not spec: continue
        nm, st, step, l0, cnt = spec.split(':'); st, step, l0, cnt = int(st), int(step), int(l0), int(cnt)
        if not name.startswith(nm): continue
        o = []; g = 0; i = 0; cur = []; est = []
        for x in out:
            o.append(x); cur.append(x)
            if x.k == 'mfma':
                if g >= st and (g - st) % step == 0 and i <= cnt:
                    if i < cnt: o.append(raw(f"s_memtime s[{94 + 2 * (i & 1)}:{95 + 2 * (i & 1)}]"))
                    if i: o.append(raw(f"v_writelane_b32 v208, s{94 + 2 * ((i - 1) & 1)}, {l0 + i - 1}", 'valu'))
                    est.append(sim(cur)[0] - 16); cur = [x]
                    i += 1
                g += 1
        print("FPEST", name, l0, est[1:])
        out = o
    return out

class Seg:
    def __init__(s):
        s.bb = []; s.forced = {}; s.rs = []; s.ms = []; s.xs = []; s.ws = []; s.ys = []; s.tiles = []; s.tail = []; s.mg = 0
        s.last = {}; s.first = {}
    def n(s): return len(s.bb)
    def force(s, g, items): s.forced.setdefault(g, []).extend(items)
    def enter(s, tiles, e):
        for kb, q in tiles: s.tiles.append([kb, q, e, 0, BIG])
    def qk(s, kb, e, kh=None):
        c, b = kb >> 1, kb & 1
        for q in PAIRS[kh][c]:
            for t in s.tiles:
                if t[:2] == [kb, q]: t[4] = min(t[4], s.n())
            C = Cd(q, b) if (c, q) in BND[kh] else Ci(q)
            for ks in range(4): s.bb.append(mfma(St(kb, q), FB(kb, ks), Qf(ks, q), C if ks == 0 else None))
            s.tiles.append([kb, q, e, s.n() + LAG, BIG])
    def usep(s, e, c, q):
        for t in s.tiles:
            if t[2] == e and t[0] >> 1 == c and t[1] == q: t[4] = min(t[4], s.n() - 1)
    def lsum(s, e, kh=None, first=False, qs=range(4)):
        for q in qs:
            cs = [c for c in range(2) if q in PAIRS[kh][c]]
            for i, c in enumerate(cs):
                s.usep(e, c, q)
                s.bb.append(mfma(Lq(q), ONES, Pf(e, c, q), 0 if (first and i == 0) else None))
    def pvt(s, db, q, e, kh, first):
        cs = [c for c in range(2) if q in PAIRS[kh][c]]
        s.first.setdefault((db, q), s.n()); s.cur = s.n()
        for k, c in enumerate(cs):
            s.usep(e, c, q)
            s.bb.append(mfma(O(db, q), FB(db >> 1, 2 * (db & 1) + c), Pf(e, c, q), 0 if (first and k == 0) else None))
        s.last[(db, q)] = s.n()
    def pv(s, i, e, kh=None, first=False):
        for d in range(2):
            for q in range(4): s.pvt(2 * i + d, q, e, kh, first)
    def kreads(s, kb, buf, e, d):
        for ks in range(4): s.rs.append((kvread(FB(kb, ks), kb >> 1, ks, KS[buf] + (kb & 1), KS[buf], 'K'), e, max(e, d)))
    def vreads(s, i, buf, e, d):
        for dd in range(2):
            for c in range(2): s.rs.append((kvread(FB(i, 2 * dd + c), c, i, VS[buf] + dd, VS[buf], 'V'), e, max(e, d)))
    def mem(s, items, g0, step, slack=6):
        g = max(g0, s.mg)
        for x in items:
            s.ms.append((x, g, g + slack))
            if x.k in VM: g += step
        s.mg = g
        return g
    def S(s, kh, pre):
        st = []
        for kb in range(4): st.append(s.n()); s.qk(kb, 0, kh)
        for kb in range(pre, 4): s.kreads(kb, 0, 0, 0 if pre == 0 else 4)
        w = wait(regs=[FB(0, j) for j in range(4)] + QALL)
        if pre == 0: s.rs.append((w, 0, 0))
        else: s.force(0, [w])
        s.force(st[1], [fbw(1)])
        return st
    def Ha(s, e, qk=None, pv=None, first=False, tags=()):
        a = s.n(); st = []
        for kb in range(4): st.append(s.n()); s.qk(kb, e ^ 1, qk)
        b0 = s.n(); s.lsum(e, pv, first); p0 = s.n(); s.pv(0, e, pv, first); p1 = s.n(); s.pv(1, e, pv, first)
        n = s.n()
        s.force(a, [fbw(0)]); s.force(st[1], [fbw(1)])
        s.kreads(2, e ^ 1, a + 1, st[2] - 16); s.kreads(3, e ^ 1, a + 1, st[2] - 8)
        s.force(st[2], PP([fbw(2, 3, tags=[('V', e)] + list(tags)), bar()], f'Ha{e}'))
        s.vreads(0, e, st[2] + 1, p0 - 8); s.vreads(1, e, st[2] + 1, p1 - 8)
        s.force(p0, [fbw(0)]); s.force(p1, [fbw(1)])
        s.vreads(2, e, st[3] + 1, n - 12); s.vreads(3, e, b0 + 1, n - 6)
        return a, st[2], b0
    def Hb(s, e, pv=None, first=False):
        a = s.n(); s.pv(2, e, pv, first); s.pv(3, e, pv, first); n = s.n()
        s.force(a, PP([fbw(2, 3, tags=[('K', e)]), bar()], 'Hb'))
        s.kreads(0, e, a + 1, n - 10); s.kreads(1, e, a + 1, n - 2)
        return a
    def Tb(s, e, pv=None, first=False):
        a = s.n(); s.pv(2, e, pv, first); m = s.n(); s.pv(3, e, pv, first); n = s.n()
        s.force(a, PP([fbw(2, 3, tags=[('V', e ^ 1)]), bar()], 'Tb'))
        s.vreads(0, e ^ 1, a + 1, n - 8); s.vreads(1, e ^ 1, a + 1, n - 4)
        s.vreads(2, e ^ 1, m + 1, n); s.vreads(3, e ^ 1, n + 1, n + 5)
    def Tc(s, e, last, kh=None, first=False):
        it = 1 if last else 0
        c0 = s.n(); s.lsum(e, kh, first, (2, 3))
        lt = [t for t in s.tiles if t[2] == e and t[4] == BIG and t[0] >= DKB]
        s.tiles = [t for t in s.tiles if t not in lt] + lt
        gs = []
        for db in range(8):
            gs.append(s.n())
            for q in (2, 3): s.pvt(db, q, e, kh, first)
        s.lsum(e, kh, first, (0, 1))
        k0 = s.n(); kst = {}
        for db in range(8):
            for q in (0, 1): s.pvt(db, q, e, kh, first); kst[(db, q)] = s.cur
        n = s.n()
        M1 = c0 + 12
        for i in range(4):
            if gs[2 * i] < M1: s.force(gs[2 * i], [fbw(i)])
        mslot = lambda db, q: (SPARE + db * 2 + q) if db < 4 else VS[1] + (db - 4) * 2 + q
        lslot = 15 if last else VS[0] + 7
        s.force(M1, PP([fbw(1, 2, 3), bar()], 'M1'))
        g = M1 + 1
        for q in (2, 3):
            x = dsw('ds_write_b32', vMW, Lq(q)[0], lslot * 1024 + (q - 2) * 4); x.lds = ('w', lslot, 'l'); x.tag = 'm'
            s.force(g, [x]); g += 1
        for j in range(16):
            db, q = j >> 1, 2 + (j & 1)
            x = dsw('ds_write_b128', vMW, O(db, q), mslot(db, q - 2) * 1024); x.lds = ('w', mslot(db, q - 2), 'M'); x.tag = 'm'
            g = min(max(g, s.last[(db, q)] + LAG), n)
            s.force(g, [x])
            if not last and q == 2:
                for r in range(4): s.ws.append((valu('v_accvgpr_write_b32', O(db, 2)[r], 0), g + 1, n))
                if db == 0:
                    for r in range(4): s.ws.append((valu('v_accvgpr_write_b32', Lq(2)[r], 0), g + 1, n))
            g += WSP[j & 1]
        M2 = min(g + 1, n)
        s.force(M2, PP([wait(tags=['m', ('c', 0) if last else ('K', 0)]), bar()], 'M2'))
        T = lambda db, q: V(SB + 4 * (db * 2 + q), 4)
        tp = PB + 32 * (e ^ 1)
        lp, lo, sc, chk, mm = V(tp, 2), V(tp + 2, 2), [V(tp + 4, 2), V(tp + 6, 2)], V(tp + 8, 2), V(tp + 10, 2)
        x = dsr('ds_read_b64', lp, vMR, lslot * 1024); x.lds = ('r', lslot, 'l', 'rel'); s.rs.append((x, M2, M2 + 1))
        for j in range(16):
            db, q = j >> 1, j & 1
            x = dsr128(T(db, q), vMR, mslot(db, q) * 1024); x.lds = ('r', mslot(db, q), 'M', 'rel'); s.rs.append((x, M2, M2 + 2 + j))
        for q in range(2): s.xs.append((valu('v_accvgpr_read_b32', lo[q], Lq(q)[0]), k0 + LAG, n))
        l = [wait(regs=[lp] + vG[it])]
        l += [valu('v_add_f32', lp[q], lp[q], lo[q]) for q in range(2)] + [valu('v_rcp_f32', sc[q][0], lp[q]) for q in range(2)]
        l += [valu('v_min_f32', mm[0], lp[0], lp[1]), valu('v_max_f32', mm[1], lp[0], lp[1])]
        l += [valu('v_mul_f32', sc[q][0], sc[q][0], vG[it][q]) for q in range(2)] + [valu('v_mov_b32', sc[q][1], sc[q][0]) for q in range(2)]
        ltail = []
        if M2 + 6 < n:
            for x in l: s.xs.append((x, M2 + 6, n))
        else: ltail = l
        if not last:
            nx = Seg()
            for i in range(3): nx.kreads(i, 0, 0, 0)
            nxt = [x for x, _, _ in nx.rs]
            h = dmahalf('V', 0, 1, sVn)
            s.mem(dmahalf('V', 0, 0, sVn) + h[:4], M1 + 1, 3, 10)
            late = [h[4]]
        else:
            nxt = cgrp(0).wreads[:4] + areads(0, 0) + cgrp(0).wreads[4:] + areads(0, 1)
            s.mem(cdma(1, 'a') + cdma(1, 'w0'), M1 + 1, 3, 12)
            late = cdma(1, 'w1')
        o = ltail
        def orv(): return [raw(f"s_or_b32 {sBad}, {sBad}, vcc_{h}", rd=['vcc', str(sBad)], wr=['scc', str(sBad)]) for h in ('lo', 'hi')]
        o += nxt[:NXA]
        o += [valu('v_cmp_gt_f32', 'vcc', f2u(2.0 ** -40), mm[0])] + orv() + [valu('v_cmp_lt_f32', 'vcc', f2u(2.0 ** 64), mm[1])] + orv()
        if not last: o += late
        for db in range(8):
            o.append(wait(regs=[T(db, 1)]))
            if db == 3: o += nxt[NXA:]
            if db == 5 and last: o += late
            for q in range(2):
                Oq = O(db, q)
                o += [valu('v_pk_add_f32', Oq[h:h + 2], Oq[h:h + 2], T(db, q)[h:h + 2]) for h in (0, 2)]
            for q in range(2):
                Oq = O(db, q)
                o += [valu('v_pk_mul_f32', Oq[h:h + 2], Oq[h:h + 2], sc[q]) for h in (0, 2)]
            for q in range(2): o.append(valu('v_pk_fma_f32', lp, O(db, q)[0:2], O(db, q)[2:4], lp))
        o += [valu('v_add_f32', lp[0], lp[0], lp[1]), salu('s_movk_i32', sTmp, 0x207), valu('v_cmp_class_f32', 'vcc', lp[0], sTmp)] + orv()
        s.tail = o
        return c0
    def trail(s, it, dl=None, sp=6):
        for dp in range(4):
            for q in range(2):
                out = O(2 * dp, q)
                d = (min(s.first[(2 * dp, q)], s.first[(2 * dp + 1, q)]) - 3) if dl is None else BIG
                x = [raw(f"s_add_u32 {sE}, {sQo[it][q]}, {hex(WS_CTX + dp * GSTR)}", rd=[str(sQo[it][q])], wr=[str(sE), 'scc'])]
                for h in range(2):
                    a = O(2 * dp + h, q)
                    x += [valu('v_cvt_pk_bf16_f32', out[2 * h], a[0], a[1]), valu('v_cvt_pk_bf16_f32', out[2 * h + 1], a[2], a[3])]
                if not (it and os.environ.get('NOCTX')): x.append(bstore(out, vL16, sWS, sE, 0, tag='ctx', fl=STFL))
                g = sp * (2 * dp + q)
                for y in x: s.ys.append((y, min(g + (3 if y.k == 'vst' else 0), d), d if dl is None else g + dl))
    def touch(s, e, a):
        s.ys += [(bload(vPFd[e], vPFa, sPF[e], sPO[e]), a + 6, a + 30)]
        if RETOUCH and e in RETOUCH: s.ys += [(Ins(f"global_load_dword {vFl}, {V(214, 2)}, off", 'vld', V(214, 2).regs(), vFl.regs()), a + 40, a + 100)]
        s.mem([salu('s_add_u32', sPO[e], sPO[e], 768 + 128 * e)], a + 31, 0)
    def emit(s, name, leave=()):
        n = s.n()
        sm = [[], []]
        j = 0
        for i, (kb, q, e, rdy, dl) in enumerate(s.tiles):
            if dl == BIG:
                if (kb, q) in leave: continue
                dl = n - 1
            T = St(kb, q); Pq = Pf(e, kb >> 1, q); b = kb & 1
            it = [valu('v_exp_f32', T[i], T[i]) for i in range(4)]
            it += [valu('v_cvt_pk_bf16_f32', Pq[2 * b], T[0], T[1]), valu('v_cvt_pk_bf16_f32', Pq[2 * b + 1], T[2], T[3])]
            for x in it: sm[j & 1].append((x, min(rdy, dl), dl))
            j += 1
        def clip(st):
            o = []; lo = 0
            for x, e, d in st:
                lo = max(lo, min(e, n))
                if lo > min(d, n): print(f"   !! {name}: deadline {d} < earliest {lo} for {x.t}")
                o.append((x, lo, max(lo, min(d, n))))
            return o
        print(name, end="")
        return fineprof(name, schedule(s.bb, s.forced, [clip(z) for z in (s.rs, s.ms, sm[0], sm[1], s.xs, s.ws, s.ys)], verbose=1)) + s.tail

def zero_init(kh):
    if kh == 0: return []
    o = []
    for r in [O(db, 2) for db in range(8)] + [Lq(2)]:
        o += [valu('v_accvgpr_write_b32', r[i], 0) for i in range(4)]
    return o
EXIT = lambda e: [salu('s_cmp_eq_u32', sR, 0), br('s_cbranch_scc1', f'M_X{e}')]
DEC = lambda: [salu('s_sub_u32', sR, sR, 1)]

def std_Ha(s, n_or_e, kmem, vmem, **kw):
    e = n_or_e & 1
    a, m, b0 = s.Ha(e, **kw)
    s.mem(vmem, a + 2, 7 if m - a >= 32 else 5)
    s.touch(e, a)
    s.mem(kmem, m + 2, 8 if s.n() - m >= 64 else 5)
    return a, m, b0

def seg_prefix():
    s = Seg()
    st = s.S(None, 0)
    s.force(st[2], PP([fbw(2, 3, tags=[('K', 1)]), bar()], 'S'))
    s.kreads(0, 1, st[2] + 1, 54); s.kreads(1, 1, st[2] + 1, 62)
    s.mem(dmafull('V', 0, sVrun) + vadv(), 1, 3)
    s.mem(dmafull('K', 0, sKrun) + kadv() + dmahalf('V', 1, 0, sVrun), st[2] + 1, 3)
    for n in range(DP - 1):
        e = n & 1
        kmem = dmafull('K', e ^ 1, sKd) if n + 3 == DP else dmafull('K', e ^ 1, sKrun) + kadv()
        std_Ha(s, n, kmem, dmahalf('V', e ^ 1, 1, sVrun) + vadv(), first=n == 0)
        a = s.Hb(e, first=n == 0)
        s.mem(dmahalf('V', e, 0, sVd if n + 2 == DP else sVrun), a + 2, 7)
    return s.emit("pre", ALLT[TA:])
def seg_diag(kh):
    s = Seg(); n = DP - 1; e = n & 1
    s.enter(ALLT[TA:], e)
    std_Ha(s, n, dmafull('K', e ^ 1, sKrun) + kadv(), dmahalf('V', e ^ 1, 1, sVd), qk=kh)
    a = s.Hb(e); s.mem(dmahalf('V', e, 0, sVrun), a + 2, 7)
    e ^= 1
    std_Ha(s, e, ksel(e ^ 1, 2) + dmafull('K', e ^ 1, sD), dmahalf('V', e ^ 1, 1, sVrun) + vadv(), pv=kh)
    a = s.Hb(e, pv=kh); s.mem(DEC() + dmahalf('V', e, 0, sVrun), a + 1, 4)
    s.tail = EXIT(e ^ 1) + [br('s_branch', f'M_H{e ^ 1}')]
    return s.emit(f"diag{kh}", ALLT[TA:])
def seg_loop(e):
    s = Seg(); s.enter(ALLT[TA:], e)
    std_Ha(s, e, ksel(e ^ 1, 2) + dmafull('K', e ^ 1, sD), dmahalf('V', e ^ 1, 1, sVrun) + vadv())
    a = s.Hb(e); s.mem(DEC() + dmahalf('V', e, 0, sVrun), a + 2, 7)
    s.tail = EXIT(e ^ 1) + ([br('s_branch', 'M_H1')] if e == 0 else [])
    return s.emit(f"loop{e}", ALLT[TA:])
def stage0(): return cdma(0, 'w0') + cdma(0, 'a') + cdma(0, 'w1') + cdma(0, 's') + cdma(1, 's')
def seg_X(e, last):
    s = Seg(); s.enter(ALLT[TA:], e)
    if last:
        a, m, b0 = s.Ha(e, tags=[('K', e)])
        s.mem(dmahalf('V', e ^ 1, 1, sVrun), a + 2, 7); s.mem(stage0(), m + 2, 6)
        for x in csetup(): s.ys.append((x, b0 + 76, BIG))
    else:
        a, m, b0 = s.Ha(e)
        s.mem(dmahalf('V', e ^ 1, 1, sVrun), a + 2, 7); s.mem(dmafull('K', e ^ 1, sKn[e ^ 1]), m + 2, 4)
        s.mem(qloads(1), b0 + 2, 4, 16)
        s.mem(item2_setup(), 0, 0, 30)
    s.Tb(e); s.Tc(e ^ 1, last)
    s.tail += [br('s_branch', 'M_C' if last else 'M_I2')]
    return s.emit(f"X{e}{last}")
def item2_setup():
    return [salu('s_sub_u32', sR, sPp, 1), salu('s_add_u32', sKrun, sKb, 8192), salu('s_mov_b32', sVrun, sVb),
            salu('s_mov_b32', sKn[0], OOB), salu('s_mov_b32', sKn[1], OOB), salu('s_mov_b32', sItem, 1)]
def seg_D(kh, last):
    s = Seg()
    st = s.S(kh, 3)
    s.force(st[2], PP([fbw(2, 3, tags=[('K', 1)]), bar()], 'S'))
    s.kreads(0, 1, st[2], st[2] + 2); s.kreads(1, 1, st[2], st[2] + 12)
    a, m, b0 = s.Ha(0, pv=kh, first=True)
    s.mem(dmafull('V', 1, sVrun) + vadv(), 1, 4)
    if last:
        s.mem(stage0(), m + 2, 5)
        for x in csetup(): s.xs.append((x, b0 + LAG, BIG))
        s.Tb(0, kh, True); s.trail(0); s.Tc(1, True)
        s.tail += [br('s_branch', 'M_C')]
        return s.emit(f"DL{kh}")
    s.mem(dmafull('K', 0, sKrun) + kadv(), st[2] + 1, 4)
    s.mem(ksel(1, 2) + dmafull('K', 1, sD), m + 1, 5)
    a = s.Hb(0, kh, True); s.mem(DEC() + dmahalf('V', 0, 0, sVrun), a + 1, 4)
    s.trail(0)
    s.tail = EXIT(1) + [br('s_branch', 'M_H1')]
    return s.emit(f"D{kh}", ALLT[TA:])
def seg_Z(kh):
    s = Seg()
    st = s.S(kh, 3)
    b0 = s.n()
    s.force(st[2], PP([fbw(2, 3, tags=[('V', 0), ('K', 1)]), bar()], 'S'))
    s.vreads(0, 0, st[2] + 1, b0 - 4); s.vreads(1, 0, st[2] + 1, b0 - 2 + 4 * (1 - kh)); s.vreads(2, 0, st[3] + 1, b0 + 6 * (1 - kh)); s.vreads(3, 0, b0 + 1, b0 + 2 + 6 * (1 - kh))
    for x in csetup(): s.xs.append((x, b0 + 1, BIG))
    s.mem(stage0(), st[2] + 1, 1)
    s.Tc(0, True, kh, True); s.trail(0)
    s.tail += [br('s_branch', 'M_C')]
    return s.emit(f"Z{kh}")

def make_cd():
    o = []
    t0, t1 = V(SB), V(SB + 1)
    o += [valu('v_and_b32', t0, 15, vLane), valu('v_lshrrev_b32', t1, 4, vLane), valu('v_lshlrev_b32', t1, 2, t1), valu('v_sub_u32', t0, t0, t1),
          valu('v_mov_b32', V(SB + 3), 0xff800000)]
    for q in (0, 3):
        o += [salu('s_xor_b32', sTmp, sRH, 1 if q else 0), salu('s_lshl_b32', sTmp, sTmp, 4), valu('v_add_u32', t1, sTmp, t0)]
        for b in range(2):
            for r in range(4):
                o += [valu('v_cmp_le_i32', 'vcc', b * 16 + r, t1), valu('v_cndmask_b32', Cd(q, b)[r], V(SB + 3), Ci(q)[r], 'vcc')]
    return o

def maxpass(it):
    o = [lab(f'M_max{it}')]
    KF = [V(PB + 4 * i, 4) for i in range(4)]
    mx = [V(PB + 16 + q) for q in range(4)]; qi = [V(PB + 20 + q) for q in range(4)]
    t0, t1, ninf = V(PB + 24), V(PB + 25), V(PB + 26)
    sI, sEnd, sO = sP[0], sP[1], sP[2]
    o += [wait(vm=0), valu('v_mov_b32', ninf, 0xff800000),
          valu('v_and_b32', t0, 15, vLane), valu('v_lshrrev_b32', t1, 4, vLane), valu('v_lshlrev_b32', t1, 2, t1), valu('v_sub_u32', t0, t0, t1)]
    for q in range(4):
        o += [salu('s_and_b32', sTmp, sQo[it][q], GSTR - 1), salu('s_lshr_b32', sTmp, sTmp, 6),
              valu('v_add_u32', qi[q], sTmp, t0), valu('v_mov_b32', mx[q], ninf)]
    o += [salu('s_mov_b32', sI, 0), salu('s_or_b32', sEnd, sTmp, 127),
          salu('s_mul_i32', sO, sH, 4 * GSTR), salu('s_add_u32', sO, sO, WS_K)]
    lp = [lab(f'M_maxl{it}')]
    for ks in range(4): lp += [salu('s_add_u32', sD2, sO, ks * GSTR), bload(KF[ks], vL16, sWS, sD2)]
    lp.append(wait(vm=0))
    for q in range(4):
        for ks in range(4): lp.append(mfma(St(0, q), KF[ks], Qf(ks, q), 0 if ks == 0 else None))
    for q in range(4):
        for r in range(4):
            lp += [salu('s_add_u32', sTmp, sI, r), valu('v_cmp_le_i32', 'vcc', sTmp, qi[q]),
                   valu('v_cndmask_b32', t0, ninf, St(0, q)[r], 'vcc'), valu('v_max_f32', mx[q], mx[q], t0)]
    lp += [salu('s_add_u32', sO, sO, 1024), salu('s_add_u32', sI, sI, 16), salu('s_cmp_lt_u32', sI, sEnd), br('s_cbranch_scc1', f'M_maxl{it}')]
    e = []
    for q in range(4):
        e += [valu('v_mov_b32', t0, mx[q]), valu('v_permlane32_swap_b32', mx[q], t0), valu('v_max_f32', mx[q], mx[q], t0),
              valu('v_mov_b32', t0, mx[q]), valu('v_permlane16_swap_b32', mx[q], t0), valu('v_max_f32', mx[q], mx[q], t0)]
        e += [valu('v_sub_f32', Ci(q)[r], 0, mx[q]) for r in range(4)]
    e += make_cd() + [br('s_branch', f'M_go{it}')]
    return o, lp, e

vTR = [[V(232 + 4 * p + i) for i in range(4)] for p in range(2)]
vTS = [V(240 + i) for i in range(4)]; vAR = [V(244), V(245)]
vSC = [V(3 + i) for i in range(4)]
vOa, vO8, vG8 = V(7), V(8), V(9)
NU1, NU2 = 9, 8
UA, UB = NU1, NU1 + NU2
def acc(cb, tb): return V(16 + 4 * (cb * 4 + tb), 4) if cb < 8 else V(216 + 4 * tb, 4)
def actblk(u): return (0 if u % 2 == 0 else 7) if u < UA else (4 + u - UA) % 8
def act(u, kl, tb): return A(32 * actblk(u) + 4 * (tb * 2 + kl), 4)
LOC = {(0, 'w0'): 0, (0, 'w1'): 4, (0, 'a'): 8, (0, 's'): 12, (1, 'a'): 16, (1, 'w0'): 20, (1, 'w1'): 32, (1, 's'): 13}
def csetup():
    o = [valu('v_accvgpr_read_b32', vTR[0][0], STASH[0]), valu('v_accvgpr_read_b32', vAR[0], STASH[1]), valu('v_accvgpr_read_b32', vTS[0], STASH[2])]
    o += [valu('v_xor_b32', vTR[0][i], i * 32, vTR[0][0]) for i in range(1, 4)]
    o += [valu('v_add_u32', vAR[1], PL, vAR[0])] + [valu('v_add_u32', vTR[1][i], PL, vTR[0][i]) for i in range(4)]
    o += [valu('v_add_u32', vTS[i], i * PL, vTS[0]) for i in range(1, 4)]
    return o
def cdma(u, part):
    sl = LOC[(u, part)]
    o = [salu('s_add_u32', 'm0', sM, sl * 1024)]
    k = u if u < UA else (u - UA) % NU2
    W = sW2 if u < UA else sWo
    if part == 'a':
        o.append(salu('s_add_u32', sD, sAH if u < UA else sAC, k * 2 * GSTR))
        l = [dma(vL16 if i < 2 else vL16c, sWS, sD, i * 1024, fl=AFL) for i in range(4)]
    elif part == 's':
        o.append(salu('s_add_u32', sD, sSH if u < UA else sSA, k * 64 * 1152))
        l = [dma(vS, W, sD, 0)]
    else:
        if u < UA: o.append(salu('s_add_u32', sD, sWH, (k * 64 + (32 if part == 'w1' else 0)) * 1152))
        else: o.append(salu('s_add_u32', sD, sWA, k * 64 * 1152 + (128 if u >= UB else 0)))
        l = [dma(vD[i], W, sD, i * 1024) for i in range(4)]
    for i, x in enumerate(l): x.tag = ('c', u); x.lds = ('w', sl + i, (u, part))
    return o + l
def areads(u, tb):
    o = []
    for kl in range(2):
        sl = LOC[(u, 'a')] + kl * 2 + (tb & 1)
        x = dsr128(act(u, kl, tb), vAR[tb >> 1], sl * 1024); x.lds = ('r', sl, (u, 'a')); o.append(x)
    return o
class Grp:
    def __init__(s, cbs, us, au, fr):
        s.cbs, s.us, s.au = cbs, us, au
        s.fr = {}
        for cb in cbs:
            for u in us:
                for kl in range(2): s.fr[(cb, u, kl)] = fr.pop(0)
    @property
    def wreads(s):
        o = []
        for (cb, u, kl), f in s.fr.items():
            for h in range(2):
                if cb == 8:
                    sl = [LOC[(u, 's')]]; cid = (u, 's'); x = tr(f[2 * h:2 * h + 2], vTS[kl * 2 + h], sl[0] * 1024)
                else:
                    p, part = (cb >> 2, 'w%d' % kl) if u < UA else (kl, 'w')
                    b = LOC[(u, part)] + 2 * h; sl = [b, b + 1]; cid = (u, part)
                    x = tr(f[2 * h:2 * h + 2], vTR[p][cb & 3], b * 1024)
                x.lds = ('r', sl, [cid] * len(sl)); o.append(x)
        return o
def cgrp(i):
    u, g = i // 3, i % 3
    return Grp([3 * g, 3 * g + 1, 3 * g + 2], [u], [u], [A(32 + 24 * g + 4 * j, 4) for j in range(6)])

def poll(name, dst, addr, soff):
    ld = lambda: bload(dst, addr, sWS, soff, fl=SC1)
    chk = [wait(regs=[dst]), valu('v_cmp_ne_u32', 'vcc', 1, dst), br('s_cbranch_vccnz', f'M_s{name}'), lab(f'M_r{name}')]
    spin = [lab(f'M_s{name}'), ld(), salu('s_add_u32', sSpin, sSpin, 1), wait(vm=0), salu('s_cmp_gt_u32', sSpin, SPINMAX), br('s_cbranch_scc1', f'M_r{name}'),
            valu('v_cmp_ne_u32', 'vcc', 1, dst), br('s_cbranch_vccnz', f'M_s{name}'), br('s_branch', f'M_r{name}')]
    chk[2].wr.add('scc')
    return ld(), chk, spin

BAR1, BARA = int(os.environ.get("BAR1", 44)), int(os.environ.get("BARA", 18))
def seg_C():
    s = Seg()
    G = [cgrp(i) for i in range(3 * NU1)]
    ring = [0]
    def fr(n):
        o = [V(144 + 4 * ((ring[0] + j) % 16), 4) for j in range(n)]; ring[0] += n; return o
    for k in range(NU2): G += [Grp([0, 1, 2], [UA + k], [UA + k], fr(6)), Grp([3, 8], [UA + k], [UA + k], fr(4))]
    iB1 = len(G)
    for k in range(NU2): G.append(Grp([4, 5], [UB + k], [UA + k], fr(4)))
    iB2 = len(G)
    for k in range(NU2 - 2): G.append(Grp([6, 7], [UB + k], [UA + k], fr(4)))
    G.append(Grp([6, 7], [UB + 6, UB + 7], [UA + 6, UA + 7], fr(8)))
    fuse = {}; luse = {}; span = {}
    for g in G:
        g.start = s.n(); g.tbs = []
        for tb in range(4):
            g.tbs.append(s.n())
            for cb in g.cbs:
                for u, au in zip(g.us, g.au):
                    ph = int(u >= UA)
                    for kl in range(2):
                        fuse.setdefault((ph, cb, tb), s.n())
                        s.bb.append(mfma(acc(cb, tb), g.fr[(cb, u, kl)], act(au, kl, tb), 0 if (u == 0 and kl == 0) else None))
                        luse[(ph, cb, tb)] = s.n()
        g.end = s.n()
    n = s.n()
    ustart = {}
    for g in G[:iB2]: ustart.setdefault(g.us[0], g.start)
    gB1, gB2 = G[iB1].start, G[iB2].start
    bars = []
    for u in range(UB): bars.append([ustart[u] + (BAR1 if u < UA else BARA), [u + 1], u])
    bars[-1][1] = [UB, UB + 1, UB + 2]
    bars.append([gB1 + 26, [UB + 3, UB + 4, UB + 5], None]); bars.append([gB1 + 74, [UB + 6, UB + 7], None])
    ready = {0: 0}
    for g, us, _ in bars:
        for u in us: ready[u] = g
    rel = {u: g for g, _, u in bars if u is not None}
    pB, cB, spB = poll('B', vFl, vFa, sFB)
    gPB = ustart[7] + 2
    order = []
    for u in range(2, UA): order += [(u, 'a'), (u, 's'), (u, 'w0'), (u, 'w1')]
    order += [(UA, 'w'), (UA, 's'), (UA + 1, 'w'), (UA, 'a'), (UA + 1, 'a'), (UA + 1, 's')]
    for u in range(UA + 2, UB): order += [(u, 'a'), (u, 'w'), (u, 's')]
    order += [(UB + k, 'w') for k in range(NU2)]
    fq = [(0, 36), (0, 24), (0, 28)]; fs = [(0, 14)]
    for u in range(2):
        fq += [(rel[u], LOC[(u, p)]) for p in ('a', 'w0', 'w1')]; fs.append((rel[u], LOC[(u, 's')]))
    extra = {}
    for u, p in order:
        F = fs if p == 's' else fq
        t, sl = F.pop(0); LOC[(u, p)] = sl
        if u in rel: F.append((rel[u], sl)); F.sort()
        if p == 'a' and u >= UA: t = max(t, gPB)
        g = s.mem(cdma(u, p), t + 2, 5 if u < UA else 4, 8)
        if os.environ.get("CDBG"): print(u, p, sl, 'free', t, 'issued till', g, 'needed', ready[u], 'lead', ready[u] - g)
    rd = []; ard = []
    busy = {}
    uregs = {}
    for i, g in enumerate(G):
        regs = list(g.fr.values())
        e = max([ready[u] for u in g.us] + [busy.get(str(r), 0) for r in regs]) + 1
        d = g.start - RDL
        if i < iB1: d = min(d, rel[g.us[0]] - RDL); uregs.setdefault(g.us[0], []).extend(regs)
        if i > 0:
            for x in g.wreads: rd.append((x, e, max(d, e)))
        for r in regs: busy[str(r)] = g.end
        need = regs
        if i < iB1 and g.start == ustart[g.us[0]]:
            u = g.us[0]
            for tb in range(4):
                ar = [act(u, kl, tb) for kl in range(2)]
                uregs[u] += ar
                if u > 0 or tb >= 2:
                    e = max(ready[u], busy.get(str(ar[0]), 0), busy.get(str(ar[1]), 0)) + 1
                    for x in areads(u, tb): ard.append((x, e, max(e, min(g.tbs[tb], rel[u]) - RDL)))
                if tb: s.force(g.tbs[tb], [wait(regs=ar)])
                else: need = need + ar
        for au in g.au:
            for tb in range(4):
                for kl in range(2): busy[str(act(au, kl, tb))] = g.end
        s.force(g.start, [wait(regs=need)])
    s.rs = rd; s.ws = ard
    for g, us, u in bars:
        tags = [('c', x) for x in us]
        if u == 0: tags.append('bad')
        if u == CTXU: tags.append('ctx')
        s.force(g, PP([wait(regs=uregs.get(u, []), tags=tags), bar()], f'c{u}'))
    s.trail(1, STS + 6, STS)
    x1 = dsw('ds_write_b32', vT0, vT1, 15 * 1024 + 8); x1.tag = 'bad'
    xs = [salu('s_lshl_b32', sTmp, sWave, 4), valu('v_mov_b32', vT0, sTmp), valu('v_mov_b32', vT1, sBad), x1, valu('v_and_b32', vT0, 0x30, vL16)]
    for x in xs: s.xs.append((x, 1, BAR1 - 6))
    s.xs.append((dsr('ds_read_b32', vT1, vT0, 15 * 1024 + 8), rel[0] + 1, rel[0] + 6))
    s.force(ustart[1] + 3, [wait(regs=[vT1]), valu('v_cmp_lt_u32', 'vcc', sSafe, vT1), br('s_cbranch_vccnz', 'M_redo')])
    y = [valu('v_and_b32', vT0, 15, vLane), valu('v_lshlrev_b32', vFa, 2, vT0)] + [bload(vSC[tb], vFa, sWS, sGC, tb * 64) for tb in range(4)]
    y += [salu('s_movk_i32', sTmp, 1152), valu('v_mul_u32_u24', vT0, sTmp, vT0),
          valu('v_lshrrev_b32', vO8, 4, vLane), valu('v_lshlrev_b32', vO8, 3, vO8), valu('v_add_u32', vO8, vO8, vT0),
          valu('v_and_b32', vOa, 16, vLane), valu('v_lshlrev_b32', vOa, 1, vOa), valu('v_add_u32', vOa, vOa, vT0),
          valu('v_and_b32', vT0, 32, vLane), valu('v_lshrrev_b32', vT0, 1, vT0), valu('v_add_u32', vOa, vOa, vT0),
          valu('v_mov_b32', vT1, 1), valu('v_mov_b32', vT0, OOB)]
    y += [raw(f"v_writelane_b32 {vT0}, {sP[4 + i]}, {i}", 'valu', rd=[str(sP[4 + i]), str(vT0)], wr=[str(vT0)]) for i in range(2)]
    for x in y: s.xs.append((x, ustart[1] + 4, rel[CTXU]))
    s.xs.append((bstore(vT1, vT0, sWS, 0, fl=STFL), rel[CTXU] + 1, rel[CTXU] + 4))
    y = [valu('v_and_b32', vFa, 12, vFa), valu('v_mov_b32', vT0, OOB), raw(f"v_writelane_b32 {vT0}, {sP[3]}, 0", 'valu', rd=[str(sP[3]), str(vT0)], wr=[str(vT0)])]
    for x in y: s.xs.append((x, rel[CTXU] + 8, rel[CTXU + 1]))
    s.xs.append((pB, ustart[6] + 20, ustart[6] + 30))
    s.force(gPB - 1, cB)
    y = [valu('v_and_b32', vFa, 7, vLane), valu('v_lshlrev_b32', vFa, 2, vFa), wait(regs=vSC)]
    for x in y: s.xs.append((x, gPB, gPB + 20))
    ev = sorted((fuse[(1, cb, tb)], luse[(0, cb, tb)], cb, tb) for cb in range(9) for tb in range(4))
    for f, l, cb, tb in ev:
        for h in range(4): s.xs.append((valu('v_mul_f32', acc(cb, tb)[h], acc(cb, tb)[h], vSC[tb]), l + LAG, f - 1))
    ev = []
    for tb in range(4):
        for p in range(4): ev.append((luse[(1, 2 * p + 1, tb)], [(2 * p, tb), (2 * p + 1, tb)], (sSt, tb * 8192), p * 1024, 'p0' if p < 2 else 'p1'))
    for p in range(2): ev.append((luse[(1, 8, 2 * p + 1)], [(8, 2 * p), (8, 2 * p + 1)], (sSt8, 0), p * 2048, 'p0'))
    ev.sort(key=lambda t: t[0])
    for l, tiles, so, io, tag in ev:
        out = acc(*tiles[0]); y = [salu('s_add_u32', sE, so[0], so[1])]
        for q, t in enumerate(tiles):
            a = acc(*t)
            y += [valu('v_cvt_pk_bf16_f32', out[2 * q], a[0], a[1]), valu('v_cvt_pk_bf16_f32', out[2 * q + 1], a[2], a[3])]
        y.append(bstore(out, vL16, sWS, sE, io, tag=tag, fl=STFL))
        for x in y: s.ys.append((x, l + LAG, l + 60))
    gS = gB2 - 6
    s.force(gS, PP([wait(tags=['p0']), bar()], 'gS'))
    s.xs.append((bstore(vT1, vT0, sWS, 0, fl=STFL), gS + 1, gS + 3))
    p0, c0, sp0 = poll('R0', vFl, vFa, sFR)
    s.xs.append((p0, gB2 + 36, gB2 + 40))
    s.force(gB2 + 70, PP(c0, 'R0') if PK else c0)
    GA = [V(16 + 4 * i, 4) for i in range(8)]; G8 = [V(48 + 2 * i, 2) for i in range(8)]
    def gather(dst, va, base, io):
        o = []
        for i in range(8): o += [salu('s_add_u32', sD, base, i * 72 * 1024), bload(dst[i], va, sWS, sD, io, fl=SC1)]
        return o
    s.mem(gather(GA, vL16, sGa, 0) + gather(G8, vL16, sG8, 0), gB2 + 71, 3, 8)
    def reduce(src, va, so, io):
        m = src[0].n; r = V(64, 8); t = V(72, 8); o = []
        for i in range(8):
            o.append(wait(regs=[src[i]]))
            dst = r if i == 0 else t
            for j in range(m): o += [valu('v_lshlrev_b32', dst[2 * j], 16, src[i][j]), valu('v_and_b32', dst[2 * j + 1], 0xffff0000, src[i][j])]
            if i: o += [valu('v_pk_add_f32', r[2 * j:2 * j + 2], r[2 * j:2 * j + 2], t[2 * j:2 * j + 2]) for j in range(m)]
        o += [valu('v_cvt_pk_bf16_f32', src[0][j], r[2 * j], r[2 * j + 1]) for j in range(m)]
        if m == 4: o += [valu('v_permlane16_swap_b32', src[0][j], src[0][2 + j]) for j in range(2)]
        return o + [bstore(src[0], va, sOut, so, io)]
    p1, c1, sp1 = poll('R1', vFl, vFa, sE)
    GB = [V(80 + 4 * i, 4) for i in range(8)]
    s.tail = reduce(GA, vOa, sOa, 0) + PP([wait(tags=['p1']), bar()], 'p1') + [bstore(vT1, vT0, sWS, 0, 128, fl=STFL), salu('s_add_u32', sE, sFR, 128)] + \
        reduce(G8, vO8, sO8, 0) + [p1] + PP(c1, 'R1') + gather(GB, vL16, sGa, 2048) + reduce(GB, vOa, sOa, 128)
    return s.emit("C"), spB + sp0 + sp1

def gen_m():
    t0, t1, t2 = V(SB), V(SB + 1), V(SB + 2)
    sPt = S(58, 8)
    head = [salu('s_cmp_ge_u32', S(2), 256), br('s_cbranch_scc1', 'M_exit')] + stamp_begin() + [
        sload(sWS[0:2], S(0, 2), 96), sload(sWo[0:2], S(0, 2), 40), sload(sW2[0:2], S(0, 2), 64), sload(sOut[0:2], S(0, 2), 80),
        valu('v_lshrrev_b32', vT0, 6, V(0)), valu('v_and_b32', vLane, 63, V(0)),
        valu('v_readfirstlane_b32', sWave, vT0)] + code_touch('M', 'M_end', vLane, sWave, V(144, 3), sP[0:3], 7) + [
        salu('s_and_b32', sH, S(2), 31), salu('s_lshr_b32', sPp, S(2), 5),
        salu('s_and_b32', sRH, sWave, 1), salu('s_lshr_b32', sKH, sWave, 1),
        salu('s_mul_i32', sM, sWave, PL),
        salu('s_lshl_b32', sTmp, sH, 2), salu('s_add_u32', sTmp, sTmp, sWave), salu('s_mul_i32', sTmp, sTmp, GSTR),
        salu('s_add_u32', sKb, sTmp, WS_K), salu('s_add_u32', sVb, sTmp, WS_V),
        valu('v_lshlrev_b32', vL16, 4, vLane), valu('v_add_u32', vL16b, 4096, vL16),
        salu('s_mov_b32', sSafe, 0), salu('s_mov_b32', sSpin, 0),
        salu('s_sub_u32', sR, 15, sPp), salu('s_lshl_b32', sKd, sR, 13), salu('s_lshl_b32', sVn, sPp, 13), salu('s_mul_i32', sD2, sH, 4 * GSTR)] + \
        ([valu('v_mov_b32', V(210), 1 - int(os.environ.get('PSKIP', 0)))] if PROF else [])
    for q in range(4):
        head += [salu('s_lshl_b32', sTmp, sKH, 1), salu('s_xor_b32', sTmp, sTmp, q), salu('s_add_u32', sD, sTmp, sRH), salu('s_and_b32', sD, sD, 1),
                 salu('s_lshl_b32', sTmp, sTmp, 1), salu('s_add_u32', sTmp, sTmp, sD), salu('s_lshl_b32', sTmp, sTmp, 10), salu('s_add_u32', sTmp, sTmp, sD2),
                 salu('s_add_u32', sQo[0][q], sTmp, sKd), salu('s_add_u32', sQo[1][q], sTmp, sVn)]
    head += [salu('s_add_u32', sVd, sVb, sKd), salu('s_add_u32', sKd, sKb, sKd), salu('s_add_u32', sVn, sVb, sVn),
             salu('s_mov_b32', sKend, sKd), salu('s_mov_b32', sVend, sVd)]
    for r, nb in ((sWS, 256 << 20), (sWo, 4096 * 1152), (sW2, 4608 * 1152), (sOut, 2048 * 1152)):
        head += [salu('s_mov_b32', r[2], nb), salu('s_mov_b32', r[3], 0x20000)]
    head += [wait(lgkm=0)]
    start = [lab('M_start'), salu('s_mov_b32', sKrun, sKb), salu('s_mov_b32', sVrun, sVb)]
    start += dmafull('K', 0, sKrun) + kadv() + qloads(0) + dmafull('K', 1, sKrun) + kadv()
    start += [salu('s_sub_u32', sR, 15 - 1 - DP, sPp), salu('s_sub_u32', sKn[0], sVn, WS_V - WS_K), salu('s_mov_b32', sKn[1], sKb),
              salu('s_mov_b32', sItem, 0), salu('s_mov_b32', sBad, 0)]
    for c in range(2):
        start += [salu('s_mov_b32', sTmp, sKH) if c == 0 else salu('s_sub_u32', sTmp, 3, sKH),
                  salu('s_lshl_b32', sD, sTmp, 11), valu('v_add_u32', vKV[c][0], sD, vL16),
                  valu('v_add_u32', vKV[c][1], 65536, vKV[c][0]), valu('v_add_u32', vKV[c][2], 131072, vKV[c][0])]
    start += [valu('v_add_u32', vMR, sM, vL16), salu('s_xor_b32', sD, sWave, 2), salu('s_mul_i32', sD, sD, PL), valu('v_add_u32', vMW, sD, vL16),
              valu('v_mov_b32', vT0, 0x3f803f80)] + [valu('v_accvgpr_write_b32', ONES[i], vT0) for i in range(4)]
    start += [valu('v_and_b32', vT0, 15, vLane), valu('v_lshlrev_b32', vT0, 2, vT0)]
    for it in range(2):
        for q in range(2):
            start += [salu('s_and_b32', sTmp, sQo[it][q], GSTR - 1), salu('s_lshr_b32', sTmp, sTmp, 4), salu('s_add_u32', sTmp, sTmp, WS_G), bload(vG[it][q], vT0, sWS, sTmp)]
    start += [salu('s_and_b32', sTmp, S(2), 7), salu('s_lshl_b32', sTmp, sTmp, 5), salu('s_lshr_b32', sD, S(2), 3), salu('s_add_u32', sTmp, sTmp, sD),
              salu('s_lshl_b32', sTmp, sTmp, 2), salu('s_add_u32', sTmp, sTmp, sWave), salu('s_mul_i32', sPO[0], sTmp, 6 * 768), salu('s_mul_i32', sPO[1], sTmp, 5184),
              valu('v_min_u32', vPFa, 6, vLane), valu('v_lshlrev_b32', vPFa, 7, vPFa)]
    start += [valu('v_mov_b32', V(CI + i), 0) for i in range(16)] + make_cd()
    sSl, sHf, sTT = sP[0], sP[1], sP[2]
    start += [salu('s_and_b32', sSl, S(2), 7), salu('s_bfe_u32', sHf, S(2), 3 | (1 << 16)), salu('s_lshr_b32', sTT, S(2), 4),
              valu('v_add_u32', vL16c, GSTR - 2048, vL16),
              salu('s_lshl_b32', sTmp, sTT, 13), salu('s_lshl_b32', sD, sWave, 11), salu('s_add_u32', sTmp, sTmp, sD),
              salu('s_mul_i32', sAH, sSl, 18 * GSTR), salu('s_add_u32', sAH, sAH, sTmp), salu('s_add_u32', sAH, sAH, WS_H),
              salu('s_mul_i32', sAC, sSl, 16 * GSTR), salu('s_add_u32', sAC, sAC, sTmp), salu('s_add_u32', sAC, sAC, WS_CTX),
              salu('s_mul_i32', sWH, sSl, 576 * 1152), salu('s_mul_i32', sWA, sSl, 512 * 1152),
              salu('s_mul_i32', sTmp, sWave, 16 * 1152), salu('s_lshl_b32', sD, sHf, 6), salu('s_add_u32', sTmp, sTmp, sD), salu('s_add_u32', sTmp, sTmp, 512),
              salu('s_add_u32', sSH, sWH, sTmp), salu('s_add_u32', sSA, sWA, sTmp),
              salu('s_mul_i32', sTmp, sHf, 640), salu('s_add_u32', sWH, sWH, sTmp), salu('s_add_u32', sWA, sWA, sTmp),
              salu('s_lshl_b32', sD, sWave, 7), salu('s_add_u32', sWH, sWH, sD),
              salu('s_lshl_b32', sD, sKH, 8), salu('s_add_u32', sWA, sWA, sD), salu('s_add_u32', sOa, sTmp, sD),
              salu('s_mul_i32', sD, sRH, 32 * 1152), salu('s_add_u32', sWA, sWA, sD),
              salu('s_lshl_b32', sD, sRH, 6), salu('s_add_u32', sOa, sOa, sD),
              salu('s_lshl_b32', sTmp, sTT, 3), salu('s_add_u32', sTmp, sTmp, sSl), salu('s_mul_i32', sTmp, sTmp, 16 * 1152), salu('s_add_u32', sOa, sOa, sTmp),
              salu('s_lshl_b32', sD, sHf, 1), salu('s_add_u32', sD, sD, sRH), salu('s_lshl_b32', sD, sD, 5), salu('s_add_u32', sO8, sTmp, sD), salu('s_add_u32', sO8, sO8, 512),
              salu('s_mul_i32', sSt, S(2), 72 * 1024), salu('s_add_u32', sSt, sSt, WS_P),
              salu('s_lshl_b32', sD, sRH, 2), salu('s_add_u32', sD, sD, sKH), salu('s_lshl_b32', sD, sD, 10), salu('s_add_u32', sSt8, sSt, sD), salu('s_add_u32', sSt8, sSt8, 65536),
              salu('s_lshl_b32', sD, sRH, 3), salu('s_add_u32', sD, sD, sKH), salu('s_lshl_b32', sD, sD, 12), salu('s_add_u32', sSt, sSt, sD),
              salu('s_andn2_b32', sTmp, S(2), 7), salu('s_mul_i32', sTmp, sTmp, 72 * 1024), salu('s_add_u32', sTmp, sTmp, WS_P),
              salu('s_lshl_b32', sD, sSl, 1), salu('s_add_u32', sD, sD, sKH), salu('s_lshl_b32', sD, sD, 2), salu('s_add_u32', sD, sD, sRH), salu('s_lshl_b32', sD, sD, 10),
              salu('s_add_u32', sGa, sTmp, sD),
              salu('s_and_b32', sD, sSl, 6), salu('s_add_u32', sD, sD, sRH), salu('s_lshl_b32', sD, sD, 10), salu('s_add_u32', sG8, sTmp, sD),
              salu('s_and_b32', sD, sSl, 1), salu('s_lshl_b32', sD, sD, 3), salu('s_add_u32', sG8, sG8, sD), salu('s_add_u32', sG8, sG8, 65536),
              salu('s_cmp_eq_u32', sKH, 0), salu('s_cselect_b32', sG8, sG8, OOB), salu('s_cselect_b32', sO8, sO8, OOB),
              salu('s_lshl_b32', sFB, sTT, 7), salu('s_lshl_b32', sD, sSl, 4), salu('s_add_u32', sFB, sFB, sD), salu('s_add_u32', sFB, sFB, WS_F),
              salu('s_lshr_b32', sFR, S(2), 3), salu('s_lshl_b32', sFR, sFR, 8), salu('s_add_u32', sFR, sFR, WS_F + 4096),
              salu('s_lshl_b32', sD, sSl, 2), salu('s_add_u32', sP[3], sFR, sD),
              salu('s_lshl_b32', sGC, sTT, 1), salu('s_add_u32', sGC, sGC, sRH), salu('s_lshl_b32', sGC, sGC, 8), salu('s_add_u32', sGC, sGC, WS_G + 8192),
              salu('s_lshl_b32', sD, sH, 2), salu('s_add_u32', sD, sD, WS_F), salu('s_lshl_b32', sTmp, sPp, 7), salu('s_add_u32', sP[5], sD, sTmp),
              salu('s_sub_u32', sTmp, 15 * 128, sTmp), salu('s_add_u32', sP[4], sD, sTmp),
              salu('s_cmp_eq_u32', sWave, 0)] + [salu('s_cselect_b32', sP[i], sP[i], OOB) for i in (3, 4, 5)]
    start += [valu('v_lshrrev_b32', t0, 3, vLane), valu('v_and_b32', t1, 6, t0), valu('v_and_b32', t2, 7, vLane), valu('v_xor_b32', t1, t1, t2),
              valu('v_lshlrev_b32', t1, 4, t1), salu('s_movk_i32', sTmp, 1152), valu('v_mad_u32_u24', vD[0], t0, sTmp, t1)]
    start += [valu('v_add_u32', vD[i], i * (9216 - 1024), vD[0]) for i in range(1, 4)]
    g_ = V(SB + 3)
    start += [valu('v_lshrrev_b32', t0, 2, vLane), valu('v_lshrrev_b32', t1, 3, vLane), valu('v_and_b32', t1, 2, t1), valu('v_and_b32', t2, 3, vLane),
              valu('v_xor_b32', t1, t1, t2), valu('v_lshlrev_b32', t1, 4, t1), valu('v_mad_u32_u24', vS, t0, sTmp, t1),
              valu('v_and_b32', t1, 6, t0), valu('v_lshlrev_b32', t1, 4, t1), valu('v_lshlrev_b32', t2, 3, t2),
              valu('v_lshlrev_b32', g_, 7, t0), valu('v_add3_u32', g_, g_, t1, t2),
              salu('s_mul_i32', sTmp, sKH, 2 * PL), valu('v_add_u32', g_, sTmp, g_), valu('v_accvgpr_write_b32', STASH[0], g_),
              salu('s_mul_i32', sTmp, sRH, 2 * PL), valu('v_add_u32', g_, sTmp, vL16), valu('v_accvgpr_write_b32', STASH[1], g_),
              valu('v_lshlrev_b32', g_, 6, t0), valu('v_bfe_u32', t1, vLane, 4, 1), valu('v_xor_b32', t1, sKH, t1), valu('v_lshlrev_b32', t1, 5, t1),
              valu('v_add3_u32', g_, g_, t1, t2), valu('v_accvgpr_write_b32', STASH[2], g_)]
    start += code_touch('M2', 'M_end', vLane, sWave, V(214, 3), S(90, 3), 7)[:-1]
    start += [salu('s_cmp_lg_u32', sSafe, 0), br('s_cbranch_scc1', 'M_max0')]
    if WARM:
        cj = lambda op, a, b, t: [salu(op, a, b), br('s_cbranch_scc1', t)]
        start += [raw('s_mov_b64 exec, 0')] + cj('s_cmp_eq_u32', sWave, 0, '@pre') + cj('s_cmp_eq_u32', sWave, 1, '@x0') + cj('s_cmp_eq_u32', sWave, 2, '@k1') + [br('s_branch', '@H')]
        start += [lab('M_w1a')] + cj('s_bitcmp1_b32', sPp, 0, '@X1') + [br('s_branch', '@X0')]
        start += [lab('M_w1b')] + cj('s_cmp_lt_u32', sPp, 2, '@s0') + [br('s_branch', '@D0')]
        start += [lab('M_w1c')] + cj('s_cmp_eq_u32', sPp, 0, '@Z0') + [br('s_branch', '@DL0')]
        start += [lab('M_w2a')] + cj('s_cmp_lt_u32', sPp, 2, '@s1') + [br('s_branch', '@D1')]
        start += [lab('M_w2b')] + cj('s_bitcmp1_b32', sPp, 0, '@XL0') + [br('s_branch', '@XL1')]
        start += [lab('M_w2c')] + cj('s_cmp_eq_u32', sPp, 0, '@Z1') + [br('s_branch', '@DL1')]
    else: start += [br('s_branch', 'M_wd')]
    wd = [lab('M_wd'), raw('s_mov_b64 exec, -1')]
    go0 = [lab('M_go0')] + PP([wait(tags=[('K', 0)]), bar()], 'go')
    C, spins = seg_C()
    C = [lab('M_C')] + C
    pre = seg_prefix() + [salu('s_cmp_eq_u32', sKH, 1), br('s_cbranch_scc1', 'M_dg1')]
    dg = [seg_diag(0), [lab('M_dg1')] + seg_diag(1)]
    H = [[lab(f'M_H{e}')] + seg_loop(e) for e in range(2)]
    xsel = [[lab(f'M_X{e}'), salu('s_cmp_eq_u32', sItem, 1), br('s_cbranch_scc1', f'M_XL{e}')] for e in range(2)]
    X1 = [seg_X(e, False) for e in range(2)]
    XL = [[lab(f'M_XL{e}')] + seg_X(e, True) for e in range(2)]
    i2 = [lab('M_I2'), salu('s_cmp_lg_u32', sSafe, 0), br('s_cbranch_scc1', 'M_max1')]
    go1 = [lab('M_go1'), salu('s_cmp_eq_u32', sKH, 1), br('s_cbranch_scc1', 'M_k1')]
    sel = [([lab('M_k1')] if kh else []) + [salu('s_cmp_lt_u32', sPp, 2), br('s_cbranch_scc1', f'M_sm{kh}')] for kh in range(2)]
    sel2 = [[lab(f'M_sm{kh}'), salu('s_cmp_eq_u32', sPp, 0), br('s_cbranch_scc1', f'M_Z{kh}')] for kh in range(2)]
    D = [seg_D(kh, False) for kh in range(2)]
    DL = [seg_D(kh, True) for kh in range(2)]
    Z = [[lab(f'M_Z{kh}')] + seg_Z(kh) for kh in range(2)]
    redo = [lab('M_redo'), wait(vm=0, lgkm=0), bar(), salu('s_mov_b32', sSafe, -1), br('s_branch', 'M_start')]
    done = prof_end(1, V(208), V(211), sWS, sWave) + prof_end(4, V(209), V(211), sWS, sWave) + stamp_end(1, sWS, sWave) + [lab('M_exit'), raw('s_endpgm', 'br')]
    mp = [maxpass(it) for it in range(2)]
    def att(p, kh, safe):
        t = 15 - p
        o = [start] + ([mp[0][0], mp[0][1], mp[0][1], mp[0][2]] if safe else [wd]) + [go0, pre, dg[kh]]
        n = DP + 1
        while n < t - 1: o.append(H[n & 1]); n += 1
        o += [xsel[n & 1], X1[n & 1], i2] + ([mp[1][0], mp[1][1], mp[1][1], mp[1][2]] if safe else []) + [go1, sel[kh]]
        if p == 0: return o + [sel2[kh], Z[kh]]
        if p == 1: return o + [sel2[kh], DL[kh]]
        o.append(D[kh]); n = 1
        while n < p - 1: o.append(H[n & 1]); n += 1
        return o + [xsel[n & 1], XL[n & 1]]
    ir = next(i for i, x in enumerate(C) if x.t.endswith('M_redo'))
    C1, C2 = C[:ir + 1], C[ir + 1:]
    paths = []
    for kh in range(2):
        for p in range(8): paths.append([head] + att(p, kh, False) + [C1, C2, done])
        for p in (0, 1, 6): paths.append([head] + att(p, kh, False) + [C1, redo] + att(p, kh, True) + [C1, C2, done])
    finish(paths + [[spins]], 'M', verbose=False)
    for p in paths: verify_lds(p, 'M')
    segs = [(None, 0, head + start), (None, 'align', []), ('pre', 0, wd + go0 + pre), ('dg0', 0, dg[0]), ('dg1', 1, dg[1]), ('H', 1, H[1] + H[0]),
            ('x0', 1, xsel[0]), ('X0', 0, X1[0]), ('x1', 1, xsel[1]), ('X1', 0, X1[1]), ('i2', 1, i2 + go1 + sel[0]), ('D0', 0, D[0]), ('k1', 1, sel[1]), ('D1', 0, D[1]),
            ('s0', 1, sel2[0]), ('DL0', 0, DL[0]), ('s1', 1, sel2[1]), ('DL1', 0, DL[1]), ('Z0', 1, Z[0]), ('Z1', 1, Z[1]),
            (None, 0, mp[0][0] + mp[0][1] + mp[0][2] + mp[1][0] + mp[1][1] + mp[1][2] + redo + spins),
            ('XL0', 1, XL[0]), ('XL1', 1, XL[1]), ('C', 1, C1 + C2 + done)]
    rets = dict(pre='@dg0', dg0='@dg1', dg1='M_wd', H='@C.1', x0='@x1', x1='M_w1a', X0='@i2', X1='@i2', i2='M_w1b', D0='@C.2', s0='M_w1c', DL0='@C.2', Z0='@C.2',
                k1='M_w2a', D1='M_w2b', s1='M_w2c', DL1='@C', Z1='@C', XL0='@C', XL1='@C', C=[(2, 'M_wd'), (4, 'M_wd'), (99, 'M_wd')])
    return text(warm_layout(segs, rets, 'M', 'M_end:\n')) + 'M_end:\n'

if __name__ == '__main__':
    t = gen_m()
    print(len(t), t.count('\n'))
    open('m_dbg.s', 'w').write(t)
```
